```python
import torch

def _softmax(x, axis=-1):
    return torch.softmax(x, dim=axis)
def _gelu(x):
    return torch.nn.functional.gelu(x, approximate="tanh")
def _silu(x):
    return torch.nn.functional.silu(x)
def _sigmoid(x):
    return torch.sigmoid(x)
def _layernorm(x, axis=-1, eps=1e-5):
    m = x.mean(dim=axis, keepdim=True)
    v = x.var(dim=axis, keepdim=True, unbiased=False)
    return (x - m) / torch.sqrt(v + eps)
def _scatter_add(tgt, idx, src, axis=0):
    return tgt.clone().index_add_(axis, idx, src)
def _segment_sum(src, seg, n):
    out = torch.zeros((n,) + src.shape[1:], dtype=src.dtype)
    return out.index_add_(0, seg, src)
def _pad(x, pw):
    flat = tuple(v for pair in reversed(pw) for v in pair)
    return torch.nn.functional.pad(x, flat)

kernel_name = 'recurrent_scan__linear_kernel_hedgehog__dense_activation_silu__prompt'

def setup_inputs():

    _w = (lambda a: (lambda t: t.to(torch.bfloat16) if t.is_floating_point() else t)(torch.as_tensor(a)))
    def _A_setup():
        B, S, D, H = 1, 2048, 512, 32
        Dh = D // H
        return {
            "x": _w((lambda *s: torch.randn(*s, dtype=torch.bfloat16) * 0.05)(B, S, D)),
            "wqkv": _w((lambda *s: torch.randn(*s, dtype=torch.bfloat16) * 0.4)(D, 3 * D)),
            "w_phi": _w((lambda *s: torch.randn(*s, dtype=torch.bfloat16) * 0.4)(H, Dh, Dh) * (Dh ** -0.5)),
            "wo": _w((lambda *s: torch.randn(*s, dtype=torch.bfloat16) * 0.2)(D, D)),
        }
    _A_in = _A_setup()

    def _B_setup():
        B, S, D, F = 1, 2048, 512, 1792
        return {
            "x": _w((lambda *s: torch.randn(*s, dtype=torch.bfloat16) * 0.05)(B, S, D)),
            "w1": _w((lambda *s: torch.randn(*s, dtype=torch.bfloat16) * 0.4)(D, F) * (D ** -0.5)),
            "w2": _w((lambda *s: torch.randn(*s, dtype=torch.bfloat16) * 0.1)(F, D) * (F ** -0.5)),
        }
    _B_in = _B_setup()

    return {
        "A_x": _A_in["x"],
        "A_wqkv": _A_in["wqkv"],
        "A_w_phi": _A_in["w_phi"],
        "A_wo": _A_in["wo"],
        "B_x": _B_in["x"],
        "B_w1": _B_in["w1"],
        "B_w2": _B_in["w2"],
    }

def reference(A_x, A_wqkv, A_w_phi, A_wo, B_x, B_w1, B_w2):
    def _A_ref(x, wqkv, w_phi, wo):
        B, S, D = x.shape
        H = 32; Dh = D // H
        qkv = (lambda x, *d: x.permute(*d))((x @ wqkv).reshape(B, S, 3, H, Dh), 2, 0, 3, 1, 4)
        q, k, v = qkv[0], qkv[1], qkv[2]
        pq = torch.einsum("bhsd,hdf->bhsf", q, w_phi)
        pk = torch.einsum("bhsd,hdf->bhsf", k, w_phi)
        phi_q = torch.concatenate([_softmax(pq, axis=-1), _softmax(-pq, axis=-1)], axis=-1)
        phi_k = torch.concatenate([_softmax(pk, axis=-1), _softmax(-pk, axis=-1)], axis=-1)
        kv = torch.einsum("bhsf,bhsd->bhfd", phi_k, v)
        z  = torch.einsum("bhsf->bhf", phi_k)
        num = torch.einsum("bhqf,bhfd->bhqd", phi_q, kv)
        den = torch.einsum("bhqf,bhf->bhq", phi_q, z)[..., None] + 1e-6
        o = num / den
        return (lambda x, *d: x.permute(*d))(o, 0, 2, 1, 3).reshape(B, S, D) @ wo

    def _B_ref(x, w1, w2):
        h = torch.einsum("bsd,df->bsf", x, w1)
        h = _silu(h)
        out = torch.einsum("bsf,fd->bsd", h, w2)
        return out

    x = A_x
    xn = _layernorm(x, axis=-1)
    s = _A_ref(xn, A_wqkv, A_w_phi, A_wo)
    g = _silu(_B_ref(xn, B_w1, B_w2))
    return x + s * g
```

```python
import re

TRANS = ("v_exp_f32", "v_log_f32", "v_rcp_f32", "v_rsq_f32", "v_sqrt_f32", "v_sin_f32", "v_cos_f32", "v_rcp_iflag_f32")

def _regs(tok):
    tok = tok.strip()
    tok = tok.replace("|", "")
    if tok.startswith("-"): tok = tok[1:]
    m = re.fullmatch(r"abs\((.*)\)", tok)
    if m: tok = m.group(1)
    m = re.fullmatch(r"([vsa])\[(\d+):(\d+)\]", tok)
    if m: return {f"{m.group(1)}{i}" for i in range(int(m.group(2)), int(m.group(3)) + 1)}
    m = re.fullmatch(r"([vsa])(\d+)", tok)
    if m: return {tok}
    if tok in ("vcc", "vcc_lo", "vcc_hi"): return {"vcc"}
    if tok in ("exec", "exec_lo", "exec_hi"): return {"exec"}
    if tok == "m0": return {"m0"}
    return set()

class Ins:
    __slots__ = ("text", "op", "ops", "mods", "kind", "wr", "rd", "srcA", "srcB", "srcC", "passes", "data", "target", "ws", "lds", "dpp", "sgpr_rd")
    def __init__(self, text):
        self.text = text
        t = text.split(";")[0].strip()
        parts = t.split(None, 1)
        op = parts[0]
        rest = parts[1] if len(parts) > 1 else ""
        self.op = re.sub(r"_(e32|e64|dpp|sdwa)$", "", op)
        self.dpp = op.endswith("_dpp") or " row_" in t or "quad_perm" in t
        ops = [o.strip() for o in rest.split(",")] if rest else []
        mods = ""
        if ops:
            last = ops[-1].split(None, 1)
            clean = []
            done = False
            for o in ops:
                if done: mods += "," + o; continue
                sp = o.split(None, 1)
                if len(sp) == 2 and not sp[0].startswith("hwreg"):
                    clean.append(sp[0]); mods = sp[1]; done = True
                else:
                    clean.append(o)
            ops = clean
        self.ops = ops; self.mods = mods
        self.wr = set(); self.rd = set(); self.srcA = self.srcB = self.srcC = set(); self.passes = 0
        self.data = set(); self.target = None; self.ws = 1; self.lds = False
        op = self.op
        R = [_regs(o) for o in ops]
        if op.startswith("v_mfma"):
            self.kind = "mfma"
            self.wr = R[0]; self.srcA, self.srcB, self.srcC = R[1], R[2], R[3]
            self.rd = R[1] | R[2] | R[3]
            self.passes = 8 if "32x32" in op else 4
        elif op.startswith("v_"):
            self.kind = "valu"
            nd = 1
            if op in ("v_add_co_u32", "v_sub_co_u32", "v_addc_co_u32", "v_subb_co_u32", "v_subrev_co_u32", "v_mad_u64_u32", "v_div_scale_f32"): nd = 2
            if op == "v_nop": nd = 0
            for r in R[:nd]: self.wr |= r
            for r in R[nd:]: self.rd |= r
            if op.startswith(("v_fmac", "v_dot2c", "v_writelane", "v_pk_fmac")) or self.dpp: self.rd |= R[0]
            if "permlane" in op and "swap" in op:
                self.wr |= R[1]; self.rd |= R[0]
            if op.startswith("v_cmpx"): self.wr |= {"exec"}
            if op == "v_cndmask_b32" and len(ops) == 3: self.rd |= {"vcc"}
        elif op.startswith("ds_"):
            self.kind = "ds"
            if op.startswith("ds_read") or "_rtn" in op or "permute" in op or "swizzle" in op:
                self.wr = R[0]
                for r in R[1:]: self.rd |= r
            else:
                for r in R: self.rd |= r
        elif op.startswith(("buffer_", "global_")):
            self.kind = "vmem"
            self.lds = bool(re.search(r"\blds\b", mods)) or "load_lds" in op
            if op in ("buffer_wbl2", "buffer_inv"):
                pass
            elif "load" in op:
                if self.lds:
                    for r in R: self.rd |= r
                    self.rd |= {"m0"}
                else:
                    self.wr = R[0]
                    for r in R[1:]: self.rd |= r
            elif "store" in op:
                for r in R: self.rd |= r
                d = R[0] if op.startswith("buffer_") else R[1]
                if op.endswith(("x3", "x4")): self.data = d
            elif "atomic" in op:
                for r in R: self.rd |= r
                if re.search(r"\bsc0\b", mods): self.wr = R[0]
        elif op.startswith("s_"):
            self.kind = "salu"
            if op == "s_nop":
                self.ws = int(ops[0], 0) + 1
            elif op.startswith("s_cbranch") or op == "s_branch":
                self.target = ops[0]
            elif op.startswith(("s_cmp", "s_bitcmp", "s_waitcnt", "s_barrier", "s_setprio", "s_sleep", "s_endpgm", "s_setreg")):
                for r in R: self.rd |= r
            else:
                if R: self.wr = R[0]
                for r in R[1:]: self.rd |= r
                if "saveexec" in op: self.wr |= {"exec"}
        else:
            raise ValueError("unknown instruction: " + text)

def need(p, c):
    n = 0
    pv = {r for r in p.wr if r[0] == "v" and r != "vcc" or r[0] == "a"}
    ps = {r for r in p.wr if r[0] == "s" or r == "vcc"}
    if p.kind == "valu":
        isdot = p.op.startswith("v_dot")
        if c.kind == "mfma" and pv & c.rd: n = max(n, 3 if isdot else 2)
        if c.kind == "valu":
            if p.op in TRANS and c.op not in TRANS and pv & c.rd: n = max(n, 1)
            if ps & c.rd:
                n = max(n, 4 if c.op in ("v_readlane_b32", "v_writelane_b32") else 2)
            if c.op in ("v_readlane_b32", "v_readfirstlane_b32") and pv & c.rd: n = max(n, 1)
            if (c.dpp or "permlane" in c.op) and pv & c.rd: n = max(n, 2)
            if isdot:
                if c.op == p.op:
                    ab = set()
                    k = 1
                    for o in c.ops[1:3]: ab |= _regs(o)
                    if pv & ab: n = max(n, 3)
                elif pv & (c.rd | c.wr): n = max(n, 3)
            if "exec" in p.wr:
                n = max(n, 5 if c.dpp else 4 if ("lane" in c.op) else 2 if "exec" in c.rd else 0)
        if c.kind == "mfma" and "exec" in p.wr: n = max(n, 4)
        if c.kind == "vmem" and ps & c.rd: n = max(n, 5)
        if isdot and c.kind in ("vmem", "ds") and pv & c.rd: n = max(n, 3)
    if p.kind == "mfma":
        big = {4: 8, 8: 12}[p.passes]
        if c.kind == "mfma":
            if p.wr & (c.srcA | c.srcB): n = max(n, big)
            if p.wr & c.srcC and not (p.wr == c.srcC and p.passes == c.passes): n = max(n, big - 2)
            if p.wr & c.wr and not (p.wr == c.srcC and p.passes == c.passes): n = max(n, big - 2)
        elif c.kind in ("valu", "vmem", "ds"):
            if p.wr & (c.rd | c.wr): n = max(n, big)
            if c.kind == "valu" and p.srcC & c.wr: n = max(n, {4: 3, 8: 7}[p.passes])
    if p.kind == "salu" and "m0" in p.wr and c.kind == "vmem" and c.lds: n = max(n, 1)
    if p.kind == "vmem" and p.data and (p.data & c.wr): n = max(n, 2 if c.kind in ("valu", "mfma") else 1)
    return n

class Prog:
    def __init__(self):
        self.items = []
    def __call__(self, text):
        for line in text.split("\n"):
            s = line.strip()
            if not s or s.startswith(";"): continue
            if s.endswith(":") and " " not in s: self.items.append(("l", s[:-1]))
            elif s.startswith("."): self.items.append(("d", s))
            else: self.items.append(("i", Ins(s)))
    def label(self, n): self.items.append(("l", n))
    def fix_hazards(self, verbose=False):
        total = 0
        for _ in range(20):
            items = self.items
            lab = {it[1]: i for i, it in enumerate(items) if it[0] == "l"}
            src = {}
            for i, it in enumerate(items):
                if it[0] == "i" and it[1].target is not None:
                    src.setdefault(lab[it[1].target], []).append(i)
            ins_at = {}
            for i, it in enumerate(items):
                if it[0] != "i": continue
                c = it[1]
                if c.kind == "salu": continue
                worst = 0
                stack = [(i - 1, 0)]
                seen = {}
                while stack:
                    j, d = stack.pop()
                    while j >= 0 and d < 13:
                        if seen.get(j, 99) <= d: break
                        seen[j] = d
                        k = items[j]
                        if k[0] == "l":
                            for sidx in src.get(j, []): stack.append((sidx, d))
                        elif k[0] == "i":
                            p = k[1]
                            if p.op in ("s_branch", "s_endpgm") and not (stack_from_branch(j, i, items, seen)):
                                pass
                            nn = need(p, c) - d
                            if nn > worst: worst = nn
                            d += p.ws + ins_at.get(j, 0)
                        if j - 1 >= 0 and items[j - 1][0] == "i" and items[j - 1][1].op in ("s_branch", "s_endpgm"):
                            break
                        j -= 1
                if worst > 0: ins_at[i] = worst
            if not ins_at: break
            new = []
            for i, it in enumerate(items):
                if i in ins_at:
                    n = ins_at[i]; total += n
                    if verbose: print("nop", n, "before", it[1].text)
                    new.append(("i", Ins(f"s_nop {n-1}")))
                new.append(it)
            self.items = new
        return total
    def text(self):
        out = []
        for k, v in self.items:
            out.append(v + ":" if k == "l" else v if k == "d" else "    " + v.text)
        return "\n".join(out) + "\n"

def stack_from_branch(j, i, items, seen):
    return True
```

```python
import sys
from asmlib import Prog

KNAME = "recurrent_scan__linear_kernel_hedgehog__dense_activation_silu__prompt_kernel"

WS_AF = 0
WS_KVP = 0x00A00000
KVP_SZ = 4608
WS_FL = 0x00B00000
WS_STAMP = 0x00C00000
WS_BYTES = 0x01000000

SLOT = 48 * 1024
TAB = 144 * 1024
T_SUM = TAB
T_SQ = TAB + 512
T_CS = TAB + 1024
T_Z = TAB + 2048
T_CNT = TAB + 2560
T_KV = TAB + 2688
T_RM = TAB + 12544
T_PHI = TAB + 13568
LDS_BYTES = 160 * 1024

LOG2E = 1.4426950408889634
import struct
def f2u(x): return struct.unpack("<I", struct.pack("<f", x))[0]

S_X, S_W, S_W2, S_WO, S_WS, S_OUT = 8, 12, 16, 20, 24, 28
S_PHI = 32
S_DBG = 34
S_WQKV = 36
S_W1 = 38
S_WAVE, S_RB, S_CG, S_TYPE = 40, 41, 42, 43
S_R, S_P = 44, 45
S_XOFF, S_WOFF = 46, 47
S_C0 = 48
S_T0, S_T1, S_T2, S_T3 = 49, 50, 51, 52
S_LX, S_LW = 53, 54
S_RB2, S_RH, S_C = 55, 56, 57
S_BOFF, S_LB = 58, 59
S_TAG = 60
S_KX, S_KW = 61, 62
S_AOFF, S_LA = 63, 64
S_SPIN = 65
S_BOFFO = 66
S_EX = 68
S_ST = 70

def srd(b): return f"s[{b}:{b+3}]"
def vr(b, n): return f"v[{b}:{b+n-1}]"

class Gen:
    def __init__(self, stop=None, stamps=False, stagger=0):
        self.P = Prog(); self.stop = stop; self.stamps = stamps; self.stagger = stagger
        self.nlab = 0; self.nst = 0
    def lab(self, p="L"):
        self.nlab += 1; return f"{p}_{self.nlab}"
    def stamp(self, i):
        if self.stamps: self.P(f"s_memtime s[{S_ST+2*i}:{S_ST+2*i+1}]")

    def prologue(self):
        P = self.P
        self.stamp(0)
        P(f"""
        s_load_dwordx4 s[{S_X}:{S_X+3}], s[0:1], 0
        s_load_dwordx4 s[{S_W}:{S_W+3}], s[0:1], 16
        s_load_dwordx4 s[{S_W2}:{S_W2+3}], s[0:1], 40
        s_load_dwordx4 s[{S_WO}:{S_WO+3}], s[0:1], 56
        s_load_dwordx2 s[{S_WS}:{S_WS+1}], s[0:1], 72
        s_cmp_ge_u32 s2, 256
        s_cbranch_scc1 L_END
        v_and_b32 v1, 63, v0
        v_lshrrev_b32 v2, 6, v0
        v_lshlrev_b32 v6, 4, v1
        v_readfirstlane_b32 s{S_WAVE}, v2
        s_and_b32 s{S_T0}, s2, 7
        s_lshr_b32 s{S_T1}, s2, 3
        """)
        P(f"""
        s_getpc_b64 s[{S_EX}:{S_EX+1}]
        s_lshl_b32 s{S_T2}, s{S_T1}, 10
        s_lshl_b32 s{S_T3}, s{S_WAVE}, 15
        s_add_u32 s{S_T2}, s{S_T2}, s{S_T3}
        s_add_u32 s{S_EX}, s{S_EX}, s{S_T2}
        s_addc_u32 s{S_EX+1}, s{S_EX+1}, 0
        s_cmp_ge_u32 s{S_T2}, CODE_BYTES
        s_cbranch_scc1 L_NOPF
        global_load_dwordx4 v[24:27], v6, s[{S_EX}:{S_EX+1}]
        L_NOPF:
        """)
        P(f"""
        s_lshr_b32 s{S_T2}, s{S_T0}, 2
        s_lshl_b32 s{S_T2}, s{S_T2}, 3
        s_and_b32 s{S_T3}, s{S_T1}, 7
        s_add_u32 s{S_RB}, s{S_T2}, s{S_T3}
        s_lshr_b32 s{S_TYPE}, s{S_T1}, 4
        s_and_b32 s{S_T2}, s{S_T0}, 3
        s_lshl_b32 s{S_T2}, s{S_T2}, 1
        s_bfe_u32 s{S_T3}, s{S_T1}, 0x10003
        s_add_u32 s{S_CG}, s{S_T2}, s{S_T3}
        s_lshl_b32 s{S_RB2}, s{S_T0}, 1
        s_add_u32 s{S_RB2}, s{S_RB2}, s{S_TYPE}
        s_mov_b32 s{S_RH}, s{S_T3}
        s_and_b32 s{S_C}, s{S_T1}, 7
        s_and_b32 s{S_R}, s{S_WAVE}, 3
        s_lshr_b32 s{S_P}, s{S_WAVE}, 2
        """)
        if self.stagger:
            P(f"""
            s_lshr_b32 s{S_T2}, s{S_T1}, 3
            s_lshl_b32 s{S_T2}, s{S_T2}, 1
            s_add_u32 s{S_T2}, s{S_T2}, s{S_T1}
            s_and_b32 s{S_C0}, s{S_T2}, {self.stagger}
            """)
        else:
            P(f"s_mov_b32 s{S_C0}, 0")
        P(f"""
        v_lshrrev_b32 v7, 3, v1
        v_and_b32 v8, 7, v1
        v_lshrrev_b32 v9, 4, v1
        v_xor_b32 v10, v8, v9
        v_lshlrev_b32 v10, 4, v10
        v_lshl_add_u32 v2, v7, 10, v10
        v_xor_b32 v3, 64, v2
        v_add_u32 v3, 0x2000, v3
        v_and_b32 v9, 1, v9
        v_lshlrev_b32 v9, 2, v9
        v_xor_b32 v10, v8, v9
        v_lshlrev_b32 v10, 4, v10
        v_lshl_add_u32 v5, v7, 10, v10
        """)
        P(f"""
        s_waitcnt lgkmcnt(0)
        s_mov_b32 s{S_WQKV}, s{S_X+2}
        s_mov_b32 s{S_WQKV+1}, s{S_X+3}
        s_mov_b32 s{S_X+2}, 0x200000
        s_mov_b32 s{S_X+3}, 0x20000
        s_mov_b32 s{S_PHI}, s{S_W}
        s_mov_b32 s{S_PHI+1}, s{S_W+1}
        s_mov_b32 s{S_OUT}, s{S_WO}
        s_mov_b32 s{S_OUT+1}, s{S_WO+1}
        s_mov_b32 s{S_DBG}, s{S_WO+2}
        s_mov_b32 s{S_DBG+1}, s{S_WO+3}
        s_mov_b32 s{S_OUT+2}, 0x200000
        s_mov_b32 s{S_OUT+3}, 0x20000
        s_mov_b32 s{S_WO}, s{S_W+2}
        s_mov_b32 s{S_WO+1}, s{S_W+3}
        s_mov_b32 s{S_WO+2}, 0x80000
        s_mov_b32 s{S_WO+3}, 0x20000
        s_mov_b32 s{S_W1}, s{S_W2}
        s_mov_b32 s{S_W1+1}, s{S_W2+1}
        s_mov_b32 s{S_W2}, s{S_W2+2}
        s_mov_b32 s{S_W2+1}, s{S_W2+3}
        s_mov_b32 s{S_W2+2}, 0x1c0000
        s_mov_b32 s{S_W2+3}, 0x20000
        s_mov_b32 s{S_WS+2}, {WS_BYTES}
        s_mov_b32 s{S_WS+3}, 0x20000
        s_mov_b32 s{S_W+3}, 0x20000
        s_lshl_b32 s{S_XOFF}, s{S_RB}, 17
        s_lshl_b32 s{S_T2}, s{S_WAVE}, 14
        s_add_u32 s{S_XOFF}, s{S_XOFF}, s{S_T2}
        s_lshl_b32 s{S_LX}, s{S_WAVE}, 11
        s_lshl_b32 s{S_LW}, s{S_WAVE}, 10
        s_add_u32 s{S_LW}, s{S_LW}, 0x4000
        """)
        P(f"""
        s_mul_i32 s{S_BOFF}, s{S_R}, {448*1024}
        s_lshl_b32 s{S_T2}, s{S_P}, 13
        s_lshl_b32 s{S_T3}, s{S_C}, 7
        s_add_u32 s{S_T2}, s{S_T2}, s{S_T3}
        s_add_u32 s{S_BOFF}, s{S_BOFF}, s{S_T2}
        s_lshl_b32 s{S_BOFFO}, s{S_R}, 17
        s_add_u32 s{S_BOFFO}, s{S_BOFFO}, s{S_T2}
        s_lshl_b32 s{S_LB}, s{S_R}, 13
        s_lshl_b32 s{S_T2}, s{S_P}, 10
        s_add_u32 s{S_LB}, s{S_LB}, s{S_T2}
        s_cmp_lg_u32 s{S_TYPE}, 0
        s_cbranch_scc1 L_TYPEB
        """)

    def chunk_setup(self, c, pitch):
        P = self.P
        P(f"""
        s_add_u32 s{S_T0}, s{S_C0}, {c}
        s_and_b32 s{S_T0}, s{S_T0}, 7
        s_lshl_b32 s{S_KX}, s{S_T0}, 7
        s_add_u32 s{S_KX}, s{S_KX}, s{S_XOFF}
        s_mul_i32 s{S_KW}, s{S_T0}, {64*pitch}
        s_add_u32 s{S_KW}, s{S_KW}, s{S_WOFF}
        """)
    def dma_list_p1(self, c, unit_offs, pitch):
        slot = (c % 3) * SLOT
        L = []
        first = True
        for i in range(2):
            L.append(f"s_add_u32 m0, s{S_LX}, {slot + i*1024}\nbuffer_load_dwordx4 v{2+i}, {srd(S_X)}, s{S_KX} offen lds")
        for u, uo in enumerate(unit_offs):
            if uo == 0:
                L.append(f"s_add_u32 m0, s{S_LW}, {slot + u*8192}\nbuffer_load_dwordx4 v4, {srd(S_W)}, s{S_KW} offen lds")
            else:
                L.append(f"s_add_u32 m0, s{S_LW}, {slot + u*8192}\ns_add_u32 s{S_T1}, s{S_KW}, {uo}\nbuffer_load_dwordx4 v4, {srd(S_W)}, s{S_T1} offen lds")
        return L
    def dma_list_b(self, j, slotaddr):
        L = []
        for st in range(4):
            if j < 7: base, sr, row = S_BOFF, S_W2, (4*j + st) * 16
            else: base, sr, row = S_BOFFO, S_WO, (4*(j-7) + st) * 16
            L.append(f"s_add_u32 m0, s{S_LB}, {slotaddr + st*2048}\ns_add_u32 s{S_T1}, s{base}, {row*1024}\nbuffer_load_dwordx4 v5, {srd(sr)}, s{S_T1} offen lds")
        return L

    def phase1(self, tiles, unit_offs, pitch, xstat_steps, xstat_dyn):
        P = self.P
        nt = len(tiles)
        per = 2 + len(unit_offs)
        BUF = [24, 44]
        def reads(buf, t):
            L = [f"ds_read_b128 {vr(BUF[buf],4)}, v{8+t}"]
            for i, (br, off, sw) in enumerate(tiles):
                d = BUF[buf] + 4 + 4*i
                L.append(f"ds_read_b64_tr_b16 {vr(d,2)}, v{br} offset:{off + t*2048}")
                L.append(f"ds_read_b64_tr_b16 {vr(d+2,2)}, v{br} offset:{off + t*2048 + 512}")
            return L
        def mfma(buf, i, first):
            br, off, sw = tiles[i]
            x = vr(BUF[buf], 4); w = vr(BUF[buf] + 4 + 4*i, 4); acc = vr(64 + 16*i, 16)
            a, b = (x, w) if sw else (w, x)
            return f"v_mfma_f32_32x32x16_bf16 {acc}, {a}, {b}, {'0' if first else acc}"
        def stats(buf, t):
            l1 = self.lab("CS")
            P(f"s_cmp_lg_u32 s{S_R}, {t}\ns_cbranch_scc1 {l1}")
            for k in range(4):
                for i in range(nt):
                    P(f"v_dot2c_f32_bf16 v{16+i}, v{BUF[buf]+4+4*i+k}, v20")
            P.label(l1)
            if t in xstat_steps:
                if xstat_dyn:
                    l2 = self.lab("XS")
                    P(f"s_cmp_lg_u32 s{S_P}, {t>>1}\ns_cbranch_scc1 {l2}")
                for k in range(4):
                    P(f"v_dot2c_f32_bf16 v14, v{BUF[buf]+k}, v20")
                    P(f"v_dot2c_f32_bf16 v15, v{BUF[buf]+k}, v{BUF[buf]+k}")
                if xstat_dyn: P.label(l2)
        def dmas(c):
            if c < 8: return self.dma_list_p1(c, unit_offs, pitch)
            return self.dma_list_b(c - 8, (c % 3) * SLOT)
        def split4(L):
            n = len(L); q = [(n + 3 - i) // 4 for i in range(4)]
            out = []; k = 0
            for x in q: out.append(L[k:k+x]); k += x
            return out
        for c in range(2):
            self.chunk_setup(c, pitch)
            for d in dmas(c): P(d)
        self.chunk_setup(2, pitch)
        pend = split4(dmas(2))
        for d in pend[0]: P(d)
        self.p1_consts()
        P(f"s_waitcnt vmcnt({per + len(pend[0])}) lgkmcnt(0)\ns_barrier")
        self.stamp(1)
        for r in reads(0, 0): P(r)
        for c in range(8):
            for t in range(4):
                buf = t & 1
                P("s_waitcnt lgkmcnt(0)")
                nxt = []
                if t < 3:
                    nxt = reads(buf ^ 1, t + 1); dm = pend[t + 1]
                else:
                    nper = len(dmas(c + 2))
                    if c < 7:
                        P(f"s_waitcnt vmcnt({nper})")
                    P("s_barrier")
                    if c < 7:
                        d = SLOT if (c + 1) % 3 else -2 * SLOT
                        for a in (8, 12, 13, 9, 10, 11):
                            P(f"v_add_u32 v{a}, {d & 0xffffffff:#x}, v{a}")
                        nxt = reads(buf ^ 1, 0)
                    if c + 3 < 8: self.chunk_setup(c + 3, pitch)
                    pend = split4(dmas(c + 3)); dm = pend[0]
                h = (len(nxt) + 1) // 2
                P(mfma(buf, 0, c == 0 and t == 0))
                for r in nxt[:h]: P(r)
                P(mfma(buf, 1, c == 0 and t == 0))
                for r in nxt[h:]: P(r)
                P(mfma(buf, 2, c == 0 and t == 0))
                if nt > 3:
                    for d in dm[:1]: P(d)
                    P(mfma(buf, 3, c == 0 and t == 0))
                    for d in dm[1:]: P(d)
                else:
                    for d in dm: P(d)
                stats(buf, t)
        for part in pend[1:]:
            for d in part: P(d)
        self.stamp(2)

    def p1_consts(self):
        P = self.P
        P(f"""
        v_mov_b32 v44, 0
        v_mov_b32 v45, 0
        v_mov_b32 v46, 0
        v_mov_b32 v47, 0
        v_lshlrev_b32 v48, 4, v0
        v_add_u32 v48, {TAB}, v48
        ds_write_b128 v48, v[44:47]
        v_cmp_gt_u32 vcc, {(12544-8192)//16}, v0
        s_and_saveexec_b64 s[{S_EX}:{S_EX+1}], vcc
        ds_write_b128 v48, v[44:47] offset:8192
        s_mov_b64 exec, s[{S_EX}:{S_EX+1}]
        v_mov_b32 v14, 0
        v_mov_b32 v15, 0
        v_mov_b32 v16, 0
        v_mov_b32 v17, 0
        v_mov_b32 v18, 0
        v_mov_b32 v19, 0
        v_mov_b32 v20, 0x3f803f80
        """)
        P(f"""
        v_and_b32 v21, 31, v1
        v_lshrrev_b32 v22, 5, v1
        v_bfe_u32 v23, v1, 1, 3
        v_xor_b32 v23, v23, v22
        v_lshlrev_b32 v23, 4, v23
        v_lshl_add_u32 v23, v21, 7, v23
        s_lshl_b32 s{S_T0}, s{S_R}, 12
        v_add_u32 v8, s{S_T0}, v23
        v_xor_b32 v9, 32, v8
        v_xor_b32 v10, 64, v8
        v_xor_b32 v11, 0x60, v8
        """)
        P(f"""
        v_bfe_u32 v49, v1, 2, 2
        v_lshl_add_u32 v50, v22, 3, v49
        v_lshlrev_b32 v50, 7, v50
        v_bfe_u32 v51, v1, 4, 1
        v_lshlrev_b32 v51, 5, v51
        v_and_b32 v52, 1, v1
        v_lshl_add_u32 v51, v52, 4, v51
        v_bfe_u32 v52, v1, 1, 1
        v_lshl_add_u32 v51, v52, 3, v51
        v_bfe_u32 v52, v1, 3, 1
        v_lshl_add_u32 v51, v52, 6, v51
        v_add_u32 v7, v50, v51
        """)
        self.type_consts()

    def stats_tables(self, nt, tau0_sgpr_bytes, do_x):
        P = self.P
        P(f"""
        v_and_b32 v24, 19, v1
        v_and_b32 v25, 4, v1
        v_lshl_or_b32 v24, v25, 1, v24
        v_and_b32 v25, 8, v1
        v_lshrrev_b32 v25, 1, v25
        v_or_b32 v24, v24, v25
        v_lshlrev_b32 v26, 2, v24
        v_add_u32 v26, s{tau0_sgpr_bytes}, v26
        """)
        for i in range(nt):
            P(f"ds_add_f32 v26, v{16+i} offset:{self.cs_stride*i}")
        P(f"""
        s_lshl_b32 s{S_T0}, s{S_R}, 7
        s_add_u32 s{S_T0}, s{S_T0}, {T_SUM}
        v_lshlrev_b32 v27, 2, v21
        v_add_u32 v27, s{S_T0}, v27
        """)
        if do_x:
            P("ds_add_f32 v27, v14\nds_add_f32 v27, v15 offset:512")
        P("s_waitcnt lgkmcnt(0)\ns_barrier")
        P(f"""
        ds_read_b32 v28, v27
        ds_read_b32 v29, v27 offset:512
        s_waitcnt lgkmcnt(0)
        v_mul_f32 v28, {f2u(1/512):#x}, v28
        v_mul_f32 v29, {f2u(1/512):#x}, v29
        v_fma_f32 v29, -v28, v28, v29
        v_max_f32 v29, 0, v29
        v_add_f32 v29, {f2u(1e-5):#x}, v29
        v_rsq_f32 v30, v29
        v_sqrt_f32 v31, v29
        """)

    def publish(self, nyoung, cnt_off, flag_off_code):
        P = self.P
        l = self.lab("PUB")
        P(f"""
        s_waitcnt vmcnt({nyoung})
        v_mov_b32 v12, {T_CNT + cnt_off}
        v_mov_b32 v13, 1
        s_mov_b64 exec, 1
        ds_add_rtn_u32 v13, v12, v13
        s_waitcnt lgkmcnt(0)
        v_readfirstlane_b32 s{S_T0}, v13
        s_cmp_lg_u32 s{S_T0}, 7
        s_cbranch_scc1 {l}
        """)
        flag_off_code()
        P(f"""
        v_mov_b32 v12, s{S_T1}
        v_mov_b32 v13, s{S_TAG}
        buffer_store_dword v13, v12, {srd(S_WS)}, 0 offen sc1
        {l}:
        s_mov_b64 exec, -1
        """)

    def get_tag(self):
        P = self.P
        l = self.lab("TAG"); e = self.lab("TAGE")
        P(f"""
        s_mov_b32 s{S_SPIN}, 0
        v_mov_b32 v12, 0
        {l}:
        global_load_dword v13, v12, s[{S_DBG}:{S_DBG+1}] sc1
        s_add_u32 s{S_SPIN}, s{S_SPIN}, 1
        s_waitcnt vmcnt(0)
        v_readfirstlane_b32 s{S_TAG}, v13
        s_cmp_gt_u32 s{S_SPIN}, SPIN_MAX
        s_cbranch_scc1 {e}
        s_cmp_eq_u32 s{S_TAG}, 0
        s_cbranch_scc1 {l}
        {e}:
        """)

    def poll(self, nflags, off_code):
        P = self.P
        l = self.lab("POLL"); e = self.lab("POLLE")
        off_code()
        P(f"""
        v_and_b32 v12, {nflags-1}, v1
        v_lshlrev_b32 v12, 2, v12
        s_mov_b32 s{S_SPIN}, 0
        {l}:
        buffer_load_dword v13, v12, {srd(S_WS)}, s{S_T1} offen sc1
        s_add_u32 s{S_SPIN}, s{S_SPIN}, 1
        s_waitcnt vmcnt(0)
        v_cmp_ne_u32 vcc, s{S_TAG}, v13
        s_cmp_gt_u32 s{S_SPIN}, SPIN_MAX
        s_cbranch_scc1 {e}
        s_cbranch_vccnz {l}
        {e}:
        """)

    def typeA(self):
        P = self.P
        pitch = 3584
        P(f"""
        s_mov_b32 s{S_W}, s{S_W1}
        s_mov_b32 s{S_W+1}, s{S_W1+1}
        s_mov_b32 s{S_W+2}, 0x1c0000
        s_mul_i32 s{S_T0}, s{S_CG}, 7
        s_lshr_b32 s{S_T0}, s{S_T0}, 1
        s_lshl_b32 s{S_T0}, s{S_T0}, 7
        s_mul_i32 s{S_WOFF}, s{S_WAVE}, {8*pitch}
        s_add_u32 s{S_WOFF}, s{S_WOFF}, s{S_T0}
        v_mul_u32_u24 v4, {pitch}, v7
        v_add_u32 v4, v4, v10
        """)
        P(f"""
        s_or_b32 s{S_T0}, s2, s{S_WAVE}
        s_cmp_lg_u32 s{S_T0}, 0
        s_cbranch_scc1 L_NOLEAD
        s_memrealtime s[{S_EX}:{S_EX+1}]
        v_mov_b32 v12, 0
        s_waitcnt lgkmcnt(0)
        s_or_b32 s{S_T0}, s{S_EX}, 1
        v_mov_b32 v13, s{S_T0}
        s_mov_b64 exec, 1
        global_store_dword v12, v13, s[{S_DBG}:{S_DBG+1}] sc1
        s_mov_b64 exec, -1
        L_NOLEAD:
        s_cmp_lg_u32 s{S_P}, 0
        s_cbranch_scc1 L_A3
        """)
        def consts(grp):
            def f():
                P(f"""
                s_and_b32 s{S_T0}, s{S_CG}, 1
                s_lshl_b32 s{S_T1}, s{S_T0}, 6
                v_xor_b32 v12, s{S_T1}, v7
                v_add_u32 v12, {0x4000 + grp*16384}, v12
                v_xor_b32 v13, 64, v12
                s_lshl_b32 s{S_T1}, s{S_T0}, 13
                v_add_u32 v13, s{S_T1}, v13
                """)
            return f
        offs = [0, 128, 256, 384]
        for grp, nt in ((0, 4), (1, 3)):
            if grp == 1: P.label("L_A3")
            self.type_consts = consts(grp)
            tiles = [(12, 0, 0), (13, 0, 0), (12, 8192, 0), (13, 8192, 0)][:nt]
            self.phase1(tiles, offs, pitch, [0, 1, 2, 3] if grp == 1 else [], False)
            self.cs_stride = 128
            P(f"s_mov_b32 s{S_T2}, {T_CS + grp*512}")
            self.stats_tables(nt, S_T2, grp == 1)
            self.epiA(nt, grp)
            if grp == 0: P("s_branch L_A_DONE")
        P.label("L_A_DONE")
        self.stamp(3)

    def epiA(self, nt, grp):
        P = self.P
        P(f"""
        v_lshlrev_b32 v32, 5, v22
        v_add_u32 v32, {T_CS + grp*512}, v32
        v_mul_f32 v33, {f2u(-LOG2E):#x}, v30
        """)
        P(f"""
        s_lshl_b32 s{S_T0}, s{S_RB}, 2
        s_add_u32 s{S_T0}, s{S_T0}, s{S_R}
        s_mul_i32 s{S_T0}, s{S_T0}, 144
        s_mul_i32 s{S_T1}, s{S_CG}, 14
        s_add_u32 s{S_T0}, s{S_T0}, s{S_T1}
        s_add_u32 s{S_T0}, s{S_T0}, {8*grp}
        s_lshl_b32 s{S_AOFF}, s{S_T0}, 10
        """)
        CS = [128, 144]
        def rd(i):
            b = CS[i & 1]
            for q in range(4):
                P(f"ds_read_b128 {vr(b+4*q,4)}, v32 offset:{i*128 + (q>>1)*64 + (q&1)*16}")
        rd(0)
        for i in range(nt):
            if i + 1 < nt:
                rd(i + 1); P("s_waitcnt lgkmcnt(4)")
            else:
                P("s_waitcnt lgkmcnt(0)")
            acc = 64 + 16*i; cs = CS[i & 1]; E = 160; O = 176 + 8*(i & 1)
            for j in range(16): P(f"v_fma_f32 v{acc+j}, -v28, v{cs+j}, v{acc+j}")
            for j in range(16): P(f"v_mul_f32 v{E+j}, v33, v{acc+j}")
            for j in range(16): P(f"v_exp_f32 v{E+j}, v{E+j}")
            for j in range(16): P(f"v_fma_f32 v{E+j}, v{E+j}, v31, v31")
            for j in range(16): P(f"v_rcp_f32 v{E+j}, v{E+j}")
            for j in range(16): P(f"v_mul_f32 v{acc+j}, v{acc+j}, v{E+j}")
            for j in range(8): P(f"v_cvt_pk_bf16_f32 v{O+j}, v{acc+2*j}, v{acc+2*j+1}")
            so = f"s{S_AOFF}"
            if i >= 2:
                P(f"s_add_u32 s{S_T1}, s{S_AOFF}, 4096"); so = f"s{S_T1}"
            for a in range(2):
                P(f"buffer_store_dwordx4 {vr(O+4*a,4)}, v6, {srd(S_WS)}, {so} offen offset:{((2*i+a)&3)*1024} sc1")

    def softmax(self, Pr, out, tmp):
        P = self.P
        m = tmp
        P(f"v_max3_f32 v{m}, v{Pr}, v{Pr+1}, v{Pr+2}")
        P(f"v_max3_f32 v{m+1}, v{Pr+3}, v{Pr+4}, v{Pr+5}")
        P(f"v_max3_f32 v{m+2}, v{Pr+6}, v{Pr+7}, v{Pr+8}")
        P(f"v_max3_f32 v{m}, v{m}, v{Pr+9}, v{Pr+10}")
        P(f"v_max3_f32 v{m+1}, v{m+1}, v{Pr+11}, v{Pr+12}")
        P(f"v_max3_f32 v{m+2}, v{m+2}, v{Pr+13}, v{Pr+14}")
        P(f"v_max3_f32 v{m}, v{m}, v{m+1}, v{Pr+15}")
        P(f"v_max_f32 v{m}, v{m}, v{m+2}")
        P(f"v_mul_f32 v{m}, {f2u(-LOG2E):#x}, v{m}")
        for j in range(16): P(f"v_fma_f32 v{Pr+j}, v{Pr+j}, s{S_T3}, v{m}")
        for j in range(16): P(f"v_exp_f32 v{Pr+j}, v{Pr+j}")
        P(f"v_add_f32 v{m}, v{Pr}, v{Pr+1}")
        P(f"v_add_f32 v{m+1}, v{Pr+2}, v{Pr+3}")
        for j in range(4, 16, 2):
            P(f"v_add_f32 v{m}, v{m}, v{Pr+j}")
            P(f"v_add_f32 v{m+1}, v{m+1}, v{Pr+j+1}")
        P(f"v_add_f32 v{m}, v{m}, v{m+1}")
        P(f"v_rcp_f32 v{m}, v{m}")
        for j in range(16): P(f"v_mul_f32 v{Pr+j}, v{Pr+j}, v{m}")
        for j in range(8): P(f"v_cvt_pk_bf16_f32 v{out+j}, v{Pr+2*j}, v{Pr+2*j+1}")

    def typeB(self):
        P = self.P
        pitch = 3072
        P.label("L_TYPEB")
        P(f"""
        s_mov_b32 s{S_W}, s{S_WQKV}
        s_mov_b32 s{S_W+1}, s{S_WQKV+1}
        s_mov_b32 s{S_W+2}, 0x180000
        s_lshl_b32 s{S_T0}, s{S_CG}, 7
        s_mul_i32 s{S_WOFF}, s{S_WAVE}, {8*pitch}
        s_add_u32 s{S_WOFF}, s{S_WOFF}, s{S_T0}
        v_mul_u32_u24 v4, {pitch}, v7
        v_add_u32 v4, v4, v10
        """)
        P(f"""
        s_cmp_gt_u32 s{S_WAVE}, 1
        s_cbranch_scc1 L_NOPHI
        s_lshl_b32 s{S_T0}, s{S_CG}, 11
        s_lshl_b32 s{S_T1}, s{S_WAVE}, 10
        s_add_u32 s{S_T0}, s{S_T0}, s{S_T1}
        s_add_u32 s{S_EX}, s{S_PHI}, s{S_T0}
        s_addc_u32 s{S_EX+1}, s{S_PHI+1}, 0
        s_add_u32 m0, s{S_T1}, {T_PHI}
        s_nop 0
        global_load_lds_dwordx4 v6, s[{S_EX}:{S_EX+1}]
        L_NOPHI:
        """)
        def consts():
            P(f"""
            s_lshl_b32 s{S_T1}, s{S_P}, 6
            v_xor_b32 v12, s{S_T1}, v7
            v_add_u32 v12, 0x4000, v12
            v_mov_b32 v13, v12
            """)
        self.type_consts = consts
        tiles = [(12, 0, 0), (12, 8192, 0), (12, 16384, 1)]
        self.phase1(tiles, [0, 1024, 2048], pitch, [0, 1, 2, 3], True)
        self.cs_stride = 256
        P(f"s_lshl_b32 s{S_T2}, s{S_P}, 7\ns_add_u32 s{S_T2}, s{S_T2}, {T_CS}")
        WP = 128
        P(f"""
        v_bfe_u32 v32, v1, 2, 2
        v_lshl_add_u32 v32, v22, 3, v32
        v_lshlrev_b32 v32, 5, v32
        v_bfe_u32 v33, v1, 4, 1
        v_lshl_add_u32 v32, v33, 4, v32
        v_bfe_u32 v33, v1, 1, 1
        v_lshl_add_u32 v32, v33, 3, v32
        s_lshl_b32 s{S_T0}, s{S_P}, 10
        s_add_u32 s{S_T0}, s{S_T0}, {T_PHI}
        v_add_u32 v32, s{S_T0}, v32
        ds_read_b64_tr_b16 v[{WP}:{WP+1}], v32
        ds_read_b64_tr_b16 v[{WP+2}:{WP+3}], v32 offset:128
        ds_read_b64_tr_b16 v[{WP+4}:{WP+5}], v32 offset:512
        ds_read_b64_tr_b16 v[{WP+6}:{WP+7}], v32 offset:640
        """)
        self.stats_tables(3, S_T2, True)
        P(f"""
        v_bfe_u32 v33, v1, 2, 1
        v_mul_u32_u24 v33, 0x8000, v33
        v_lshl_or_b32 v33, v33, 16, v33
        """)
        for j in range(8): P(f"v_xor_b32 v{WP+j}, v33, v{WP+j}")
        SEL = 136
        P(f"""
        v_lshlrev_b32 v33, 4, v22
        v_sub_u32 v33, v21, v33
        v_mov_b32 v34, 0x3f80
        v_mov_b32 v35, 0x3f800000
        """)
        for j in range(8):
            P(f"""
            v_cmp_eq_u32 vcc, {2*j}, v33
            v_cndmask_b32 v{SEL+j}, 0, v34, vcc
            v_cmp_eq_u32 vcc, {2*j+1}, v33
            v_cndmask_b32 v{SEL+j}, v{SEL+j}, v35, vcc
            """)
        P(f"""
        v_mul_f32 v29, v30, v28
        ds_write_b32 v27, v30 offset:{T_RM - T_SUM}
        ds_write_b32 v27, v29 offset:{T_RM - T_SUM + 512}
        v_lshlrev_b32 v32, 5, v22
        v_add_u32 v32, s{S_T2}, v32
        s_lshl_b32 s{S_T0}, s{S_R}, 7
        s_add_u32 s{S_T0}, s{S_T0}, {T_RM}
        v_lshlrev_b32 v34, 4, v22
        v_add_u32 v34, s{S_T0}, v34
        s_mov_b32 s{S_T3}, {f2u(LOG2E):#x}
        """)
        CSK, CSQ, RR, RM = 144, 160, 176, 192
        for q in range(4): P(f"ds_read_b128 {vr(CSK+4*q,4)}, v32 offset:{256 + (q>>1)*64 + (q&1)*16}")
        P(f"ds_read_b32 v35, v26 offset:512")
        for q in range(4): P(f"ds_read_b128 {vr(RR+4*q,4)}, v34 offset:{q*32}")
        for q in range(4): P(f"ds_read_b128 {vr(RM+4*q,4)}, v34 offset:{512 + q*32}")
        P("s_waitcnt lgkmcnt(9)")
        AQ, AK, AV = 64, 80, 96
        KB = 208
        for j in range(16): P(f"v_fma_f32 v{AK+j}, -v28, v{CSK+j}, v{AK+j}")
        for j in range(16): P(f"v_mul_f32 v{AK+j}, v30, v{AK+j}")
        for j in range(8): P(f"v_cvt_pk_bf16_f32 v{KB+j}, v{AK+2*j}, v{AK+2*j+1}")
        PK0, PK1 = 216, 232
        P(f"v_mfma_f32_32x32x16_bf16 {vr(PK0,16)}, {vr(WP,4)}, {vr(KB,4)}, 0")
        P(f"v_mfma_f32_32x32x16_bf16 {vr(PK1,16)}, {vr(WP+4,4)}, {vr(KB+4,4)}, 0")
        for q in range(4): P(f"ds_read_b128 {vr(CSQ+4*q,4)}, v32 offset:{(q>>1)*64 + (q&1)*16}")
        P("s_waitcnt lgkmcnt(4)")
        for j in range(16): P(f"v_mul_f32 v{RM+j}, v35, v{RM+j}")
        for j in range(16): P(f"v_fma_f32 v{AV+j}, v{AV+j}, v{RR+j}, -v{RM+j}")
        VB0, VB1 = 176, 184
        for j in range(8): P(f"v_cvt_pk_bf16_f32 v{VB1+j}, v{AV+2*j}, v{AV+2*j+1}")
        P(f"v_bfe_i32 v36, v1, 4, 1\nv_not_b32 v37, v36")
        for j in range(8): P(f"v_and_b32 v{VB0+j}, v37, v{VB1+j}")
        for j in range(8): P(f"v_and_b32 v{VB1+j}, v36, v{VB1+j}")
        PH = 192
        TT = 80
        PT = 200
        KV = 96
        for a, PKa, VBa in ((0, PK0, VB0), (1, PK1, VB1)):
            self.softmax(PKa, PH, 38)
            P(f"v_mfma_f32_32x32x16_bf16 {vr(TT,16)}, {vr(PH,4)}, {vr(SEL,4)}, 0")
            P(f"v_mfma_f32_32x32x16_bf16 {vr(TT,16)}, {vr(PH+4,4)}, {vr(SEL+4,4)}, {vr(TT,16)}")
            for j in range(8): P(f"v_cvt_pk_bf16_f32 v{PT+j}, v{TT+2*j}, v{TT+2*j+1}")
            P(f"v_mfma_f32_32x32x16_bf16 {vr(KV,16)}, {vr(PT,4)}, {vr(VBa,4)}, {'0' if a == 0 else vr(KV,16)}")
            P(f"v_mfma_f32_32x32x16_bf16 {vr(KV,16)}, {vr(PT+4,4)}, {vr(VBa+4,4)}, {vr(KV,16)}")
            z = 41 + a
            P(f"v_add_f32 v{z}, v{TT}, v{TT+1}\nv_add_f32 v43, v{TT+2}, v{TT+3}")
            for j in range(4, 16, 2):
                P(f"v_add_f32 v{z}, v{z}, v{TT+j}\nv_add_f32 v43, v43, v{TT+j+1}")
            P(f"v_add_f32 v{z}, v{z}, v43")
        P(f"""
        s_lshl_b32 s{S_T0}, s{S_P}, 8
        s_add_u32 s{S_T0}, s{S_T0}, {T_Z}
        v_lshlrev_b32 v43, 2, v21
        v_add_u32 v43, s{S_T0}, v43
        ds_add_f32 v43, v41
        ds_add_f32 v43, v42 offset:128
        s_mul_i32 s{S_T0}, s{S_P}, {SLOT}
        s_add_u32 s{S_T0}, s{S_T0}, 0x8000
        s_lshl_b32 s{S_T1}, s{S_R}, 12
        s_add_u32 s{S_T1}, s{S_T1}, s{S_T0}
        v_add_u32 v44, s{S_T1}, v6
        s_lshl_b32 s{S_T1}, s{S_R}, 10
        s_add_u32 s{S_T1}, s{S_T1}, s{S_T0}
        v_add_u32 v45, s{S_T1}, v6
        """)
        for i in range(4): P(f"ds_write_b128 v44, {vr(KV+4*i,4)} offset:{i*1024}")
        P("s_waitcnt lgkmcnt(0)\ns_barrier")
        for rr in range(4): P(f"ds_read_b128 {vr(216+4*rr,4)}, v45 offset:{rr*4096}")
        P(f"v_lshlrev_b32 v46, 3, v1\nv_add_u32 v47, {T_Z}, v46\nds_read_b64 v[232:233], v47")
        self.get_tag()
        P("s_waitcnt lgkmcnt(0)")
        for j in range(4):
            P(f"v_add_f32 v{216+j}, v{216+j}, v{220+j}\nv_add_f32 v{224+j}, v{224+j}, v{228+j}")
        for j in range(4): P(f"v_add_f32 v{216+j}, v{216+j}, v{224+j}")
        P(f"""
        v_cvt_pk_bf16_f32 v220, v216, v217
        v_cvt_pk_bf16_f32 v221, v218, v219
        s_lshl_b32 s{S_T0}, s{S_CG}, 4
        s_add_u32 s{S_T0}, s{S_T0}, s{S_RB}
        s_mul_i32 s{S_T0}, s{S_T0}, {KVP_SZ}
        s_add_u32 s{S_T0}, s{S_T0}, {WS_KVP}
        s_lshl_b32 s{S_T1}, s{S_WAVE}, 9
        s_add_u32 s{S_T1}, s{S_T1}, s{S_T0}
        buffer_store_dwordx2 v[220:221], v46, {srd(S_WS)}, s{S_T1} offen sc1
        s_cmp_lg_u32 s{S_WAVE}, 0
        s_cbranch_scc1 L_NOZ
        s_add_u32 s{S_T0}, s{S_T0}, 4096
        buffer_store_dwordx2 v[232:233], v46, {srd(S_WS)}, s{S_T0} offen sc1
        L_NOZ:
        """)
        QB = 208
        for j in range(16): P(f"v_fma_f32 v{AQ+j}, -v28, v{CSQ+j}, v{AQ+j}")
        for j in range(16): P(f"v_mul_f32 v{AQ+j}, v30, v{AQ+j}")
        for j in range(8): P(f"v_cvt_pk_bf16_f32 v{QB+j}, v{AQ+2*j}, v{AQ+2*j+1}")
        P(f"v_mfma_f32_32x32x16_bf16 {vr(80,16)}, {vr(WP,4)}, {vr(QB,4)}, 0")
        P(f"v_mfma_f32_32x32x16_bf16 {vr(96,16)}, {vr(WP+4,4)}, {vr(QB+4,4)}, 0")
        self.softmax(80, 48, 38)
        def fo():
            P(f"""
            s_lshl_b32 s{S_T1}, s{S_CG}, 7
            s_lshl_b32 s{S_T2}, s{S_RB}, 2
            s_add_u32 s{S_T1}, s{S_T1}, s{S_T2}
            s_add_u32 s{S_T1}, s{S_T1}, {WS_FL + 0x2000}
            """)
        self.publish(0, 0, fo)
        self.softmax(96, 56, 38)
        self.stamp(3)

    def o_phase(self):
        P = self.P
        def po():
            P(f"s_lshl_b32 s{S_T1}, s{S_CG}, 7\ns_add_u32 s{S_T1}, s{S_T1}, {WS_FL + 0x2000}")
        self.poll(16, po)
        self.stamp(6)
        P(f"""
        v_mul_u32_u24 v16, {KVP_SZ}, v22
        v_lshl_add_u32 v16, v21, 4, v16
        s_mul_i32 s{S_T0}, s{S_CG}, {16*KVP_SZ}
        s_add_u32 s{S_T0}, s{S_T0}, {WS_KVP}
        s_lshl_b32 s{S_T1}, s{S_WAVE}, 9
        s_add_u32 s{S_T1}, s{S_T1}, s{S_T0}
        """)
        LD = 64
        for j in range(8):
            P(f"buffer_load_dwordx4 {vr(LD+4*j,4)}, v16, {srd(S_WS)}, s{S_T1} offen sc1")
            if j < 7: P(f"s_add_u32 s{S_T1}, s{S_T1}, {2*KVP_SZ}")
        P(f"""
        v_lshrrev_b32 v17, 3, v1
        v_mul_u32_u24 v17, {KVP_SZ}, v17
        v_and_b32 v18, 7, v1
        v_lshlrev_b32 v18, 4, v18
        v_add_u32 v17, v17, v18
        s_and_b32 s{S_T1}, s{S_WAVE}, 1
        s_mul_i32 s{S_T1}, s{S_T1}, {8*KVP_SZ}
        s_add_u32 s{S_T1}, s{S_T1}, s{S_T0}
        s_lshr_b32 s{S_T2}, s{S_WAVE}, 1
        s_lshl_b32 s{S_T3}, s{S_T2}, 7
        s_add_u32 s{S_T1}, s{S_T1}, s{S_T3}
        s_add_u32 s{S_T1}, s{S_T1}, 4096
        buffer_load_dwordx4 v[96:99], v17, {srd(S_WS)}, s{S_T1} offen sc1
        s_mul_i32 s{S_T2}, s{S_T2}, {17*144}
        s_add_u32 s{S_T2}, s{S_T2}, {T_KV + 16*144}
        v_add_u32 v18, s{S_T2}, v18
        """)
        P(f"""
        v_lshl_or_b32 v19, v21, 1, v22
        v_and_b32 v24, 3, v19
        v_and_b32 v25, 4, v19
        v_lshl_or_b32 v24, v25, 1, v24
        v_and_b32 v25, 8, v19
        v_lshrrev_b32 v25, 1, v25
        v_or_b32 v24, v24, v25
        v_bfe_u32 v25, v19, 4, 1
        v_mad_u32_u24 v24, v25, 17, v24
        v_mul_u32_u24 v24, 144, v24
        v_lshrrev_b32 v25, 5, v19
        v_lshl_add_u32 v24, v25, 4, v24
        s_mul_i32 s{S_T0}, s{S_P}, {34*144}
        s_lshl_b32 s{S_T1}, s{S_R}, 5
        s_add_u32 s{S_T0}, s{S_T0}, s{S_T1}
        s_add_u32 s{S_T0}, s{S_T0}, {T_KV}
        v_add_u32 v24, s{S_T0}, v24
        """)
        S = 32
        for j in range(8):
            P(f"s_waitcnt vmcnt({8-j})")
            for k in range(4):
                src = LD + 4*j + k
                if j == 0:
                    P(f"v_lshlrev_b32 v{S+2*k}, 16, v{src}\nv_and_b32 v{S+2*k+1}, 0xffff0000, v{src}")
                else:
                    P(f"v_lshlrev_b32 v40, 16, v{src}\nv_and_b32 v41, 0xffff0000, v{src}")
                    P(f"v_add_f32 v{S+2*k}, v{S+2*k}, v40\nv_add_f32 v{S+2*k+1}, v{S+2*k+1}, v41")
        for k in range(4): P(f"v_permlane32_swap_b32 v{S+k}, v{S+4+k}")
        for k in range(4): P(f"v_add_f32 v{S+k}, v{S+k}, v{S+4+k}")
        P(f"ds_write_b128 v24, {vr(S,4)}")
        P("s_waitcnt vmcnt(0)")
        for k in range(4): P(f"ds_add_f32 v18, v{96+k} offset:{4*k}")
        P(f"""
        v_and_b32 v24, 3, v1
        v_and_b32 v25, 4, v1
        v_lshl_or_b32 v24, v25, 1, v24
        v_and_b32 v25, 8, v1
        v_lshrrev_b32 v25, 1, v25
        v_or_b32 v24, v24, v25
        v_cmp_gt_u32 vcc, 16, v21
        v_cndmask_b32 v24, 16, v24, vcc
        v_mul_u32_u24 v24, 144, v24
        v_lshl_add_u32 v24, v22, 6, v24
        s_mul_i32 s{S_T0}, s{S_P}, {34*144}
        s_add_u32 s{S_T0}, s{S_T0}, {T_KV}
        v_add_u32 v24, s{S_T0}, v24
        s_lshl_b32 s{S_T0}, s{S_RB}, 2
        s_add_u32 s{S_T0}, s{S_T0}, s{S_R}
        s_mul_i32 s{S_T0}, s{S_T0}, 144
        s_lshl_b32 s{S_T1}, s{S_CG}, 2
        s_add_u32 s{S_T0}, s{S_T0}, s{S_T1}
        s_lshl_b32 s{S_T1}, s{S_P}, 1
        s_add_u32 s{S_T0}, s{S_T0}, s{S_T1}
        s_add_u32 s{S_T0}, s{S_T0}, 112
        s_lshl_b32 s{S_AOFF}, s{S_T0}, 10
        s_waitcnt lgkmcnt(0)
        s_barrier
        """)
        for a in range(2):
            for q in range(4): P(f"ds_read_b128 {vr(64+16*a+4*q,4)}, v24 offset:{a*17*144 + 16*q}")
        for a in range(2):
            P(f"s_waitcnt lgkmcnt({4-4*a})")
            for j in range(8): P(f"v_cvt_pk_bf16_f32 v{16+8*a+j}, v{64+16*a+2*j}, v{64+16*a+2*j+1}")
        for a in range(2):
            O = 64 + 16*a
            P(f"v_mfma_f32_32x32x16_bf16 {vr(O,16)}, {vr(16+8*a,4)}, {vr(48+8*a,4)}, 0")
            P(f"v_mfma_f32_32x32x16_bf16 {vr(O,16)}, {vr(20+8*a,4)}, {vr(52+8*a,4)}, {vr(O,16)}")
        for a in range(2):
            O = 64 + 16*a
            P(f"v_add_f32 v{O+8}, {f2u(1e-6):#x}, v{O+8}\nv_rcp_f32 v{O+8}, v{O+8}")
            for j in range(8): P(f"v_mul_f32 v{O+j}, v{O+j}, v{O+8}")
            for j in range(4): P(f"v_cvt_pk_bf16_f32 v{32+4*a+j}, v{O+2*j}, v{O+2*j+1}")
            P(f"buffer_store_dwordx4 {vr(32+4*a,4)}, v6, {srd(S_WS)}, s{S_AOFF} offen offset:{a*1024} sc1")
        def fo():
            P(f"""
            s_lshl_b32 s{S_T1}, s{S_RB}, 7
            s_lshl_b32 s{S_T2}, s{S_CG}, 2
            s_add_u32 s{S_T1}, s{S_T1}, s{S_T2}
            s_add_u32 s{S_T1}, s{S_T1}, {WS_FL + 0x1000}
            """)
        self.publish(0, 8, fo)
        P("v_and_b32 v21, 31, v1\nv_lshrrev_b32 v22, 5, v1")

    def bstage(self, isA):
        P = self.P
        P(f"""
        s_lshl_b32 s{S_T0}, s{S_P}, 6
        v_xor_b32 v8, s{S_T0}, v7
        s_lshl_b32 s{S_T0}, s{S_R}, 13
        v_add_u32 v8, s{S_T0}, v8
        v_add_u32 v9, {SLOT}, v8
        v_add_u32 v10, {2*SLOT}, v8
        """)
        def rd(j):
            b = 8 + (8 + j) % 3
            for st in range(4):
                d = 112 + 16*j + 4*st
                P(f"ds_read_b64_tr_b16 {vr(d,2)}, v{b} offset:{st*2048}")
                P(f"ds_read_b64_tr_b16 {vr(d+2,2)}, v{b} offset:{st*2048+512}")
        if isA:
            self.get_tag()
            def fo():
                P(f"""
                s_lshl_b32 s{S_T1}, s{S_RB}, 7
                s_lshl_b32 s{S_T2}, s{S_CG}, 2
                s_add_u32 s{S_T1}, s{S_T1}, s{S_T2}
                s_add_u32 s{S_T1}, s{S_T1}, {WS_FL}
                """)
            self.publish(0, 4, fo)
        P("s_waitcnt vmcnt(0)\ns_barrier")
        self.stamp(4)
        rd(0); P("s_waitcnt lgkmcnt(0)"); rd(1); P("s_waitcnt lgkmcnt(0)"); rd(2)
        P("s_waitcnt lgkmcnt(0)\ns_barrier")
        for j in (3, 4, 5):
            for d in self.dma_list_b(j, ((8 + j) % 3) * SLOT): P(d)
        for j in range(3, 9):
            younger = 4 * (min(j + 2, 8) - j)
            P(f"s_waitcnt vmcnt({younger})\ns_barrier")
            rd(j)
            P("s_waitcnt lgkmcnt(0)")
            if j + 3 < 9:
                P("s_barrier")
                for d in self.dma_list_b(j + 3, ((8 + j) % 3) * SLOT): P(d)
        self.stamp(5)

    def phase2(self):
        P = self.P
        ASL = 32768
        P(f"""
        s_lshl_b32 s{S_T0}, s{S_RB2}, 2
        s_lshl_b32 s{S_T1}, s{S_RH}, 1
        s_add_u32 s{S_T0}, s{S_T0}, s{S_T1}
        s_add_u32 s{S_T0}, s{S_T0}, s{S_P}
        s_mul_i32 s{S_T0}, s{S_T0}, 144
        s_mul_i32 s{S_T1}, s{S_R}, 28
        s_add_u32 s{S_T1}, s{S_T1}, s{S_T0}
        s_lshl_b32 s{S_AOFF}, s{S_T1}, 10
        s_lshl_b32 s{S_T1}, s{S_R}, 3
        s_add_u32 s{S_T1}, s{S_T1}, s{S_T0}
        s_add_u32 s{S_T1}, s{S_T1}, 112
        s_lshl_b32 s{S_KX}, s{S_T1}, 10
        s_lshl_b32 s{S_LA}, s{S_R}, 13
        s_lshl_b32 s{S_T1}, s{S_P}, 12
        s_add_u32 s{S_LA}, s{S_LA}, s{S_T1}
        s_lshl_b32 s{S_T1}, s{S_R}, 13
        v_add_u32 v8, s{S_T1}, v6
        v_add_u32 v9, 0x10000, v8
        """)
        P(f"""
        s_lshl_b32 s{S_T0}, s{S_RB2}, 17
        s_lshl_b32 s{S_T1}, s{S_RH}, 16
        s_add_u32 s{S_T0}, s{S_T0}, s{S_T1}
        s_lshr_b32 s{S_T1}, s{S_R}, 1
        s_lshl_b32 s{S_T1}, s{S_T1}, 15
        s_add_u32 s{S_T0}, s{S_T0}, s{S_T1}
        s_lshl_b32 s{S_T1}, s{S_C}, 7
        s_add_u32 s{S_T0}, s{S_T0}, s{S_T1}
        s_lshl_b32 s{S_T1}, s{S_P}, 6
        s_add_u32 s{S_T0}, s{S_T0}, s{S_T1}
        s_and_b32 s{S_T1}, s{S_R}, 1
        s_lshl_b32 s{S_T1}, s{S_T1}, 5
        s_add_u32 s{S_KW}, s{S_T0}, s{S_T1}
        v_lshlrev_b32 v10, 10, v21
        v_lshl_add_u32 v10, v22, 4, v10
        buffer_load_dwordx4 v[2:5], v10, {srd(S_X)}, s{S_KW} offen
        """)
        def ph():
            P(f"s_lshl_b32 s{S_T1}, s{S_RB2}, 7\ns_add_u32 s{S_T1}, s{S_T1}, {WS_FL}")
        self.poll(8, ph)
        P("s_barrier")
        self.stamp(7)
        def dma(j):
            base, off = (S_AOFF, j*4096) if j < 7 else (S_KX, (j-7)*4096)
            P(f"s_add_u32 m0, s{S_LA}, {(j % 4) * ASL}\ns_add_u32 s{S_T1}, s{base}, {off}")
            for f in range(4):
                P(f"buffer_load_dwordx4 v6, {srd(S_WS)}, s{S_T1} offen offset:{f*1024} sc1 lds")
        def compute(j):
            accb = 48 if j < 7 else 80
            ar = 8 + ((j % 4) >> 1); ao = ((j % 4) & 1) * ASL
            for st in range(4):
                for rt in range(2):
                    P(f"ds_read_b128 {vr(16+8*st+4*rt,4)}, v{ar} offset:{ao + rt*4096 + st*1024}")
            for st in range(4):
                P(f"s_waitcnt lgkmcnt({6-2*st})")
                for rt in range(2):
                    acc = vr(accb + 16*rt, 16)
                    first = (j in (0, 7)) and st == 0
                    P(f"v_mfma_f32_32x32x16_bf16 {acc}, {vr(112+16*j+4*st,4)}, {vr(16+8*st+4*rt,4)}, {'0' if first else acc}")
        for j in range(3): dma(j)
        for j in range(7):
            younger = 4 * (min(j + 2, 6) - j)
            P(f"s_waitcnt vmcnt({younger})\ns_barrier")
            if j + 3 < 7: dma(j + 3)
            compute(j)
        def po():
            P(f"s_lshl_b32 s{S_T1}, s{S_RB2}, 7\ns_add_u32 s{S_T1}, s{S_T1}, {WS_FL + 0x1000}")
        self.stamp(8)
        self.poll(8, po)
        self.stamp(9)
        dma(7); dma(8)
        P("s_barrier")
        self.red_addr()
        self.red_write(48, 0x8000, 16)
        P(f"s_waitcnt vmcnt(4) lgkmcnt(0)\ns_barrier")
        self.red_read(112, 0x8000)
        compute2 = compute
        compute(7)
        P(f"s_waitcnt vmcnt(0)\ns_barrier")
        compute(8)
        self.red_sum(136, 112)
        for j in range(8): P(f"v_mul_f32 v{112+j}, {f2u(-LOG2E):#x}, v{136+j}")
        for j in range(8): P(f"v_exp_f32 v{112+j}, v{112+j}")
        for j in range(8): P(f"v_add_f32 v{112+j}, 1.0, v{112+j}")
        for j in range(8): P(f"v_rcp_f32 v{112+j}, v{112+j}")
        for j in range(8): P(f"v_mul_f32 v{136+j}, v{136+j}, v{112+j}")
        self.red_write(80, 0x8000, 16, own=144)
        P(f"s_waitcnt lgkmcnt(0)\ns_barrier")
        self.red_read(112, 0x8000)
        P("s_waitcnt lgkmcnt(0)")
        self.red_sum(144, 112)
        for k in range(4):
            P(f"v_lshlrev_b32 v{152+2*k}, 16, v{2+k}\nv_and_b32 v{153+2*k}, 0xffff0000, v{2+k}")
        for j in range(8): P(f"v_fma_f32 v{152+j}, v{144+j}, v{136+j}, v{152+j}")
        for k in range(4): P(f"v_cvt_pk_bf16_f32 v{160+k}, v{152+2*k}, v{153+2*k}")
        P(f"buffer_store_dwordx4 v[160:163], v10, {srd(S_OUT)}, s{S_KW} offen")
        self.stamp(10)

    def red_addr(self):
        P = self.P
        P(f"""
        s_lshl_b32 s{S_T0}, s{S_P}, 15
        s_lshl_b32 s{S_T1}, s{S_R}, 11
        s_add_u32 s{S_T1}, s{S_T1}, s{S_T0}
        v_add_u32 v11, s{S_T1}, v6
        s_lshl_b32 s{S_T2}, s{S_R}, 13
        v_add_u32 v12, s{S_T2}, v11
        v_xor_b32 v13, 0x1000, v12
        v_xor_b32 v14, 0x1800, v12
        v_xor_b32 v12, 0x800, v12
        """)
    def red_write(self, acc, base, _, own=136):
        P = self.P
        for pc in range(4):
            l1 = self.lab("RW"); l2 = self.lab("RW")
            r = acc + 8*pc
            P(f"s_cmp_eq_u32 s{S_R}, {pc}\ns_cbranch_scc1 {l1}")
            P(f"ds_write_b128 v11, {vr(r,4)} offset:{base + pc*8192}")
            P(f"ds_write_b128 v11, {vr(r+4,4)} offset:{base + pc*8192 + 1024}")
            P(f"s_branch {l2}")
            P.label(l1)
            for j in range(8): P(f"v_mov_b32 v{own+j}, v{r+j}")
            P.label(l2)
    def red_read(self, dst, base):
        P = self.P
        for k in range(3):
            P(f"ds_read_b128 {vr(dst+8*k,4)}, v{12+k} offset:{base}")
            P(f"ds_read_b128 {vr(dst+8*k+4,4)}, v{12+k} offset:{base+1024}")
    def red_sum(self, own, src):
        P = self.P
        for j in range(8): P(f"v_add_f32 v{own+j}, v{own+j}, v{src+j}")
        for j in range(8): P(f"v_add_f32 v{src+8+j}, v{src+8+j}, v{src+16+j}")
        for j in range(8): P(f"v_add_f32 v{own+j}, v{own+j}, v{src+8+j}")

    def write_stamps(self):
        P = self.P
        if not self.stamps: return
        P(f"""
        s_memrealtime s[{S_ST+22}:{S_ST+23}]
        s_waitcnt lgkmcnt(0)
        s_lshl_b32 s{S_T0}, s2, 3
        s_add_u32 s{S_T0}, s{S_T0}, s{S_WAVE}
        s_lshl_b32 s{S_T0}, s{S_T0}, 6
        s_add_u32 s{S_T0}, s{S_T0}, {WS_STAMP}
        v_mov_b32 v12, 0
        s_mov_b64 exec, 1
        """)
        for i in range(12):
            P(f"v_mov_b32 v13, s{S_ST+2*i}\nbuffer_store_dword v13, v12, {srd(S_WS)}, s{S_T0} offen offset:{4*i}")

    def build(self):
        P = self.P
        if self.stamps:
            for i in range(12): P(f"s_mov_b32 s{S_ST+2*i}, 0")
        self.prologue()
        self.typeA()
        self.bstage(True)
        P("s_branch L_PH2")
        self.typeB()
        self.bstage(False)
        self.o_phase()
        P.label("L_PH2")
        self.phase2()
        self.write_stamps()
        P.label("L_END")
        P("s_endpgm")
        P.fix_hazards()
        hdr = open("recurrent_scan__linear_kernel_hedgehog__dense_activation_silu__prompt.s.ref").read().split("; Override")[0]
        out = hdr + f"; @launch grid=(256,1,1) block=(512,1,1) lds={LDS_BYTES}\n"
        out += f'.amdgcn_target "amdgcn-amd-amdhsa--gfx950"\n.set SPIN_MAX, 200000\n.set CODE_BYTES, L_CODE_END - {KNAME} - 2048\n.text\n.globl {KNAME}\n.p2align 8\n.type {KNAME},@function\n{KNAME}:\n'
        out += P.text()
        out += ".rept 512\ns_nop 0\n.endr\nL_CODE_END:\ns_endpgm\n"
        out += f""".section .rodata,"a"
.p2align 6
.amdhsa_kernel {KNAME}
  .amdhsa_next_free_vgpr 256
  .amdhsa_next_free_sgpr 102
  .amdhsa_accum_offset 256
  .amdhsa_group_segment_fixed_size 0
  .amdhsa_kernarg_size 80
  .amdhsa_user_sgpr_count 2
  .amdhsa_user_sgpr_kernarg_segment_ptr 1
  .amdhsa_system_sgpr_workgroup_id_x 1
.end_amdhsa_kernel
"""
        return out

if __name__ == "__main__":
    import argparse
    ap = argparse.ArgumentParser()
    ap.add_argument("-o", default="recurrent_scan__linear_kernel_hedgehog__dense_activation_silu__prompt.s")
    ap.add_argument("--stamps", action="store_true")
    ap.add_argument("--stagger", type=int, default=0)
    a = ap.parse_args()
    open(a.o, "w").write(Gen(stamps=a.stamps, stagger=a.stagger).build())
```

```python
import sys
from asmlib import Prog

KNAME = "recurrent_scan__linear_kernel_hedgehog__dense_activation_silu__prompt_kernel"

WS_AF = 0
WS_KVP = 0x00A00000
KVP_SZ = 4608
WS_FL = 0x00B00000
WS_STAMP = 0x00C00000
WS_BYTES = 0x01000000

SLOT = 48 * 1024
TAB = 144 * 1024
T_SUM = TAB
T_SQ = TAB + 512
T_CS = TAB + 1024
T_Z = TAB + 2048
T_CNT = TAB + 2560
T_KV = TAB + 2688
T_RM = TAB + 12544
T_PHI = TAB + 13568
LDS_BYTES = 160 * 1024

LOG2E = 1.4426950408889634
import struct
def f2u(x): return struct.unpack("<I", struct.pack("<f", x))[0]

S_X, S_W, S_W2, S_WO, S_WS, S_OUT = 8, 12, 16, 20, 24, 28
S_PHI = 32
S_DBG = 34
S_WQKV = 36
S_W1 = 38
S_WAVE, S_RB, S_CG, S_TYPE = 40, 41, 42, 43
S_R, S_P = 44, 45
S_XOFF, S_WOFF = 46, 47
S_C0 = 48
S_T0, S_T1, S_T2, S_T3 = 49, 50, 51, 52
S_LX, S_LW = 53, 54
S_RB2, S_RH, S_C = 55, 56, 57
S_BOFF, S_LB = 58, 59
S_TAG = 60
S_KX, S_KW = 61, 62
S_AOFF, S_LA = 63, 64
S_SPIN = 65
S_BOFFO = 66
S_EX = 68
S_ST = 70

def srd(b): return f"s[{b}:{b+3}]"
def vr(b, n): return f"v[{b}:{b+n-1}]"

class Gen:
    def __init__(self, stop=None, stamps=False, stagger=0, x=()):
        self.P = Prog(); self.stop = stop; self.stamps = stamps; self.stagger = stagger
        self.nlab = 0; self.nst = 0; self.x = set(x)
    def lab(self, p="L"):
        self.nlab += 1; return f"{p}_{self.nlab}"
    def stamp(self, name):
        name = str(name)
        if self.stamps and name in self.stamps:
            i = self.stamps.index(name)
            self.P(f"{'s_memrealtime' if 'rt' in self.x else 's_memtime'} s[{S_ST+2*i}:{S_ST+2*i+1}]")

    def prologue(self):
        P = self.P
        self.stamp(0)
        P(f"""
        s_load_dwordx4 s[{S_X}:{S_X+3}], s[0:1], 0
        s_load_dwordx4 s[{S_W}:{S_W+3}], s[0:1], 16
        s_load_dwordx4 s[{S_W2}:{S_W2+3}], s[0:1], 40
        s_load_dwordx4 s[{S_WO}:{S_WO+3}], s[0:1], 56
        s_load_dwordx2 s[{S_WS}:{S_WS+1}], s[0:1], 72
        s_cmp_ge_u32 s2, 256
        s_cbranch_scc1 L_END
        v_and_b32 v1, 63, v0
        v_lshrrev_b32 v2, 6, v0
        v_lshlrev_b32 v6, 4, v1
        v_readfirstlane_b32 s{S_WAVE}, v2
        s_and_b32 s{S_T0}, s2, 7
        s_lshr_b32 s{S_T1}, s2, 3
        """)
        P(f"""
        s_getpc_b64 s[{S_EX}:{S_EX+1}]
        s_lshl_b32 s{S_T2}, s{S_T1}, 10
        s_lshl_b32 s{S_T3}, s{S_WAVE}, 15
        s_add_u32 s{S_T2}, s{S_T2}, s{S_T3}
        s_add_u32 s{S_EX}, s{S_EX}, s{S_T2}
        s_addc_u32 s{S_EX+1}, s{S_EX+1}, 0
        s_cmp_ge_u32 s{S_T2}, CODE_BYTES
        s_cbranch_scc1 L_NOPF
        global_load_dwordx4 v[24:27], v6, s[{S_EX}:{S_EX+1}]
        L_NOPF:
        """)
        P(f"""
        s_lshr_b32 s{S_T2}, s{S_T0}, 2
        s_lshl_b32 s{S_T2}, s{S_T2}, 3
        s_and_b32 s{S_T3}, s{S_T1}, 7
        s_add_u32 s{S_RB}, s{S_T2}, s{S_T3}
        s_lshr_b32 s{S_TYPE}, s{S_T1}, 4
        s_and_b32 s{S_T2}, s{S_T0}, 3
        s_lshl_b32 s{S_T2}, s{S_T2}, 1
        s_bfe_u32 s{S_T3}, s{S_T1}, 0x10003
        s_add_u32 s{S_CG}, s{S_T2}, s{S_T3}
        s_lshl_b32 s{S_RB2}, s{S_T0}, 1
        s_add_u32 s{S_RB2}, s{S_RB2}, s{S_TYPE}
        s_mov_b32 s{S_RH}, s{S_T3}
        s_and_b32 s{S_C}, s{S_T1}, 7
        s_and_b32 s{S_R}, s{S_WAVE}, 3
        s_lshr_b32 s{S_P}, s{S_WAVE}, 2
        """)
        if self.stagger:
            P(f"""
            s_lshr_b32 s{S_T2}, s{S_T1}, 3
            s_lshl_b32 s{S_T2}, s{S_T2}, 1
            s_add_u32 s{S_T2}, s{S_T2}, s{S_T1}
            s_and_b32 s{S_C0}, s{S_T2}, {self.stagger}
            """)
        else:
            P(f"s_mov_b32 s{S_C0}, 0")
        P(f"""
        v_lshrrev_b32 v7, 3, v1
        v_and_b32 v8, 7, v1
        v_lshrrev_b32 v9, 4, v1
        v_xor_b32 v10, v8, v9
        v_lshlrev_b32 v10, 4, v10
        v_lshl_add_u32 v2, v7, 10, v10
        v_xor_b32 v3, 64, v2
        v_add_u32 v3, 0x2000, v3
        v_and_b32 v9, 1, v9
        v_lshlrev_b32 v9, 2, v9
        v_xor_b32 v10, v8, v9
        v_lshlrev_b32 v10, 4, v10
        v_lshl_add_u32 v5, v7, 10, v10
        """)
        P(f"""
        s_waitcnt lgkmcnt(0)
        s_mov_b32 s{S_WQKV}, s{S_X+2}
        s_mov_b32 s{S_WQKV+1}, s{S_X+3}
        s_mov_b32 s{S_X+2}, 0x200000
        s_mov_b32 s{S_X+3}, 0x20000
        s_mov_b32 s{S_PHI}, s{S_W}
        s_mov_b32 s{S_PHI+1}, s{S_W+1}
        s_mov_b32 s{S_OUT}, s{S_WO}
        s_mov_b32 s{S_OUT+1}, s{S_WO+1}
        s_mov_b32 s{S_DBG}, s{S_WO+2}
        s_mov_b32 s{S_DBG+1}, s{S_WO+3}
        s_mov_b32 s{S_OUT+2}, 0x200000
        s_mov_b32 s{S_OUT+3}, 0x20000
        s_mov_b32 s{S_WO}, s{S_W+2}
        s_mov_b32 s{S_WO+1}, s{S_W+3}
        s_mov_b32 s{S_WO+2}, 0x80000
        s_mov_b32 s{S_WO+3}, 0x20000
        s_mov_b32 s{S_W1}, s{S_W2}
        s_mov_b32 s{S_W1+1}, s{S_W2+1}
        s_mov_b32 s{S_W2}, s{S_W2+2}
        s_mov_b32 s{S_W2+1}, s{S_W2+3}
        s_mov_b32 s{S_W2+2}, 0x1c0000
        s_mov_b32 s{S_W2+3}, 0x20000
        s_mov_b32 s{S_WS+2}, {WS_BYTES}
        s_mov_b32 s{S_WS+3}, 0x20000
        s_mov_b32 s{S_W+3}, 0x20000
        s_lshl_b32 s{S_XOFF}, s{S_RB}, 17
        s_lshl_b32 s{S_T2}, s{S_WAVE}, 14
        s_add_u32 s{S_XOFF}, s{S_XOFF}, s{S_T2}
        s_lshl_b32 s{S_LX}, s{S_WAVE}, 11
        s_lshl_b32 s{S_LW}, s{S_WAVE}, 10
        s_add_u32 s{S_LW}, s{S_LW}, 0x4000
        """)
        P(f"""
        s_mul_i32 s{S_BOFF}, s{S_R}, {448*1024}
        s_lshl_b32 s{S_T2}, s{S_P}, 13
        s_lshl_b32 s{S_T3}, s{S_C}, 7
        s_add_u32 s{S_T2}, s{S_T2}, s{S_T3}
        s_add_u32 s{S_BOFF}, s{S_BOFF}, s{S_T2}
        s_lshl_b32 s{S_BOFFO}, s{S_R}, 17
        s_add_u32 s{S_BOFFO}, s{S_BOFFO}, s{S_T2}
        s_lshl_b32 s{S_LB}, s{S_R}, 13
        s_lshl_b32 s{S_T2}, s{S_P}, 10
        s_add_u32 s{S_LB}, s{S_LB}, s{S_T2}
        s_cmp_lg_u32 s{S_TYPE}, 0
        s_cbranch_scc1 L_TYPEB
        """)

    def chunk_setup(self, c, pitch):
        P = self.P
        P(f"""
        s_add_u32 s{S_T0}, s{S_C0}, {c}
        s_and_b32 s{S_T0}, s{S_T0}, 7
        s_lshl_b32 s{S_KX}, s{S_T0}, 7
        s_add_u32 s{S_KX}, s{S_KX}, s{S_XOFF}
        s_mul_i32 s{S_KW}, s{S_T0}, {64*pitch}
        s_add_u32 s{S_KW}, s{S_KW}, s{S_WOFF}
        """)
    def dma_list_p1(self, c, unit_offs, pitch):
        slot = (c % 3) * SLOT
        L = []
        first = True
        for i in range(2):
            L.append(f"s_add_u32 m0, s{S_LX}, {slot + i*1024}\nbuffer_load_dwordx4 v{2+i}, {srd(S_X)}, s{S_KX} offen lds")
        for u, uo in enumerate(unit_offs):
            if uo == 0:
                L.append(f"s_add_u32 m0, s{S_LW}, {slot + u*8192}\nbuffer_load_dwordx4 v4, {srd(S_W)}, s{S_KW} offen lds")
            else:
                L.append(f"s_add_u32 m0, s{S_LW}, {slot + u*8192}\ns_add_u32 s{S_T1}, s{S_KW}, {uo}\nbuffer_load_dwordx4 v4, {srd(S_W)}, s{S_T1} offen lds")
        return L
    def dma_list_b(self, j, slotaddr):
        L = []
        for st in range(4):
            if j < 7: base, sr, row = S_BOFF, S_W2, (4*j + st) * 16
            else: base, sr, row = S_BOFFO, S_WO, (4*(j-7) + st) * 16
            L.append(f"s_add_u32 m0, s{S_LB}, {slotaddr + st*2048}\ns_add_u32 s{S_T1}, s{base}, {row*1024}\nbuffer_load_dwordx4 v5, {srd(sr)}, s{S_T1} offen lds")
        return L

    def phase1(self, tiles, unit_offs, pitch, xstat_steps, xstat_dyn):
        P = self.P
        nt = len(tiles)
        per = 2 + len(unit_offs)
        BUF = [24, 44]
        def reads(buf, t):
            L = [f"ds_read_b128 {vr(BUF[buf],4)}, v{8+t}"]
            for i, (br, off, sw) in enumerate(tiles):
                d = BUF[buf] + 4 + 4*i
                L.append(f"ds_read_b64_tr_b16 {vr(d,2)}, v{br} offset:{off + t*2048}")
                L.append(f"ds_read_b64_tr_b16 {vr(d+2,2)}, v{br} offset:{off + t*2048 + 512}")
            return L
        def mfma(buf, i, first):
            br, off, sw = tiles[i]
            x = vr(BUF[buf], 4); w = vr(BUF[buf] + 4 + 4*i, 4); acc = vr(64 + 16*i, 16)
            a, b = (x, w) if sw else (w, x)
            return f"v_mfma_f32_32x32x16_bf16 {acc}, {a}, {b}, {'0' if first else acc}"
        def stats(buf, t):
            l1 = self.lab("CS")
            P(f"s_cmp_lg_u32 s{S_R}, {t}\ns_cbranch_scc1 {l1}")
            for k in range(4):
                for i in range(nt):
                    P(f"v_dot2c_f32_bf16 v{16+i}, v{BUF[buf]+4+4*i+k}, v20")
            P.label(l1)
            if t in xstat_steps:
                if xstat_dyn:
                    l2 = self.lab("XS")
                    P(f"s_cmp_lg_u32 s{S_P}, {t>>1}\ns_cbranch_scc1 {l2}")
                for k in range(4):
                    P(f"v_dot2c_f32_bf16 v14, v{BUF[buf]+k}, v20")
                    P(f"v_dot2c_f32_bf16 v15, v{BUF[buf]+k}, v{BUF[buf]+k}")
                if xstat_dyn: P.label(l2)
        def dmas(c):
            if 'nodma' in self.x and c >= 3: return []
            if c < 8: return self.dma_list_p1(c, unit_offs, pitch)
            return self.dma_list_b(c - 8, (c % 3) * SLOT)
        def split4(L):
            n = len(L); q = [(n + 3 - i) // 4 for i in range(4)]
            out = []; k = 0
            for x in q: out.append(L[k:k+x]); k += x
            return out
        for c in range(2):
            self.chunk_setup(c, pitch)
            for d in dmas(c): P(d)
        self.chunk_setup(2, pitch)
        pend = split4(dmas(2))
        for d in pend[0]: P(d)
        self.p1_consts()
        P(f"s_waitcnt vmcnt({per + len(pend[0])}) lgkmcnt(0)\ns_barrier")
        self.stamp(1)
        for r in reads(0, 0): P(r)
        for c in range(8):
            for t in range(4):
                buf = t & 1
                P("s_waitcnt lgkmcnt(0)")
                nxt = []
                if t < 3:
                    nxt = reads(buf ^ 1, t + 1); dm = pend[t + 1]
                else:
                    nper = len(dmas(c + 2))
                    if c < 7:
                        P(f"s_waitcnt vmcnt({nper})")
                    P("s_barrier")
                    if c < 7:
                        d = SLOT if (c + 1) % 3 else -2 * SLOT
                        for a in (8, 12, 13, 9, 10, 11):
                            P(f"v_add_u32 v{a}, {d & 0xffffffff:#x}, v{a}")
                        nxt = reads(buf ^ 1, 0)
                    if c + 3 < 8: self.chunk_setup(c + 3, pitch)
                    pend = split4(dmas(c + 3)); dm = pend[0]
                h = (len(nxt) + 1) // 2
                P(mfma(buf, 0, c == 0 and t == 0))
                for r in nxt[:h]: P(r)
                P(mfma(buf, 1, c == 0 and t == 0))
                for r in nxt[h:]: P(r)
                P(mfma(buf, 2, c == 0 and t == 0))
                if nt > 3:
                    for d in dm[:1]: P(d)
                    P(mfma(buf, 3, c == 0 and t == 0))
                    for d in dm[1:]: P(d)
                else:
                    for d in dm: P(d)
                if 'nostats' not in self.x: stats(buf, t)
                if t == 3: self.stamp(f'c{c}')
        for part in pend[1:]:
            for d in part: P(d)
        self.stamp(2)

    def p1_consts(self):
        P = self.P
        P(f"""
        v_mov_b32 v44, 0
        v_mov_b32 v45, 0
        v_mov_b32 v46, 0
        v_mov_b32 v47, 0
        v_lshlrev_b32 v48, 4, v0
        v_add_u32 v48, {TAB}, v48
        ds_write_b128 v48, v[44:47]
        v_cmp_gt_u32 vcc, {(12544-8192)//16}, v0
        s_and_saveexec_b64 s[{S_EX}:{S_EX+1}], vcc
        ds_write_b128 v48, v[44:47] offset:8192
        s_mov_b64 exec, s[{S_EX}:{S_EX+1}]
        v_mov_b32 v14, 0
        v_mov_b32 v15, 0
        v_mov_b32 v16, 0
        v_mov_b32 v17, 0
        v_mov_b32 v18, 0
        v_mov_b32 v19, 0
        v_mov_b32 v20, 0x3f803f80
        """)
        P(f"""
        v_and_b32 v21, 31, v1
        v_lshrrev_b32 v22, 5, v1
        v_bfe_u32 v23, v1, 1, 3
        v_xor_b32 v23, v23, v22
        v_lshlrev_b32 v23, 4, v23
        v_lshl_add_u32 v23, v21, 7, v23
        s_lshl_b32 s{S_T0}, s{S_R}, 12
        v_add_u32 v8, s{S_T0}, v23
        v_xor_b32 v9, 32, v8
        v_xor_b32 v10, 64, v8
        v_xor_b32 v11, 0x60, v8
        """)
        P(f"""
        v_bfe_u32 v49, v1, 2, 2
        v_lshl_add_u32 v50, v22, 3, v49
        v_lshlrev_b32 v50, 7, v50
        v_bfe_u32 v51, v1, 4, 1
        v_lshlrev_b32 v51, 5, v51
        v_and_b32 v52, 1, v1
        v_lshl_add_u32 v51, v52, 4, v51
        v_bfe_u32 v52, v1, 1, 1
        v_lshl_add_u32 v51, v52, 3, v51
        v_bfe_u32 v52, v1, 3, 1
        v_lshl_add_u32 v51, v52, 6, v51
        v_add_u32 v7, v50, v51
        """)
        self.type_consts()

    def stats_tables(self, nt, tau0_sgpr_bytes, do_x):
        P = self.P
        P(f"""
        v_and_b32 v24, 19, v1
        v_and_b32 v25, 4, v1
        v_lshl_or_b32 v24, v25, 1, v24
        v_and_b32 v25, 8, v1
        v_lshrrev_b32 v25, 1, v25
        v_or_b32 v24, v24, v25
        v_lshlrev_b32 v26, 2, v24
        v_add_u32 v26, s{tau0_sgpr_bytes}, v26
        """)
        for i in range(nt):
            P(f"ds_add_f32 v26, v{16+i} offset:{self.cs_stride*i}")
        P(f"""
        s_lshl_b32 s{S_T0}, s{S_R}, 7
        s_add_u32 s{S_T0}, s{S_T0}, {T_SUM}
        v_lshlrev_b32 v27, 2, v21
        v_add_u32 v27, s{S_T0}, v27
        """)
        if do_x:
            P("ds_add_f32 v27, v14\nds_add_f32 v27, v15 offset:512")
        self.stamp("st0")
        P("s_waitcnt lgkmcnt(0)")
        self.stamp("st1")
        P("s_barrier")
        self.stamp("st2")
        P(f"""
        ds_read_b32 v28, v27
        ds_read_b32 v29, v27 offset:512
        s_waitcnt lgkmcnt(0)
        v_mul_f32 v28, {f2u(1/512):#x}, v28
        v_mul_f32 v29, {f2u(1/512):#x}, v29
        v_fma_f32 v29, -v28, v28, v29
        v_max_f32 v29, 0, v29
        v_add_f32 v29, {f2u(1e-5):#x}, v29
        v_rsq_f32 v30, v29
        v_sqrt_f32 v31, v29
        """)

    def publish(self, nyoung, cnt_off, flag_off_code):
        P = self.P
        l = self.lab("PUB")
        P(f"""
        s_waitcnt vmcnt({nyoung})
        v_mov_b32 v12, {T_CNT + cnt_off}
        v_mov_b32 v13, 1
        s_mov_b64 exec, 1
        ds_add_rtn_u32 v13, v12, v13
        s_waitcnt lgkmcnt(0)
        v_readfirstlane_b32 s{S_T0}, v13
        s_cmp_lg_u32 s{S_T0}, 7
        s_cbranch_scc1 {l}
        """)
        flag_off_code()
        P(f"""
        v_mov_b32 v12, s{S_T1}
        v_mov_b32 v13, s{S_TAG}
        buffer_store_dword v13, v12, {srd(S_WS)}, 0 offen sc1
        {l}:
        s_mov_b64 exec, -1
        """)

    def get_tag(self):
        P = self.P
        l = self.lab("TAG"); e = self.lab("TAGE")
        P(f"""
        s_mov_b32 s{S_SPIN}, 0
        v_mov_b32 v12, 0
        {l}:
        global_load_dword v13, v12, s[{S_DBG}:{S_DBG+1}] sc1
        s_add_u32 s{S_SPIN}, s{S_SPIN}, 1
        s_waitcnt vmcnt(0)
        v_readfirstlane_b32 s{S_TAG}, v13
        s_cmp_gt_u32 s{S_SPIN}, SPIN_MAX
        s_cbranch_scc1 {e}
        s_cmp_eq_u32 s{S_TAG}, 0
        s_cbranch_scc1 {l}
        {e}:
        """)

    def poll(self, nflags, off_code):
        P = self.P
        l = self.lab("POLL"); e = self.lab("POLLE")
        off_code()
        P(f"""
        v_and_b32 v12, {nflags-1}, v1
        v_lshlrev_b32 v12, 2, v12
        s_mov_b32 s{S_SPIN}, 0
        {l}:
        buffer_load_dword v13, v12, {srd(S_WS)}, s{S_T1} offen sc1
        s_add_u32 s{S_SPIN}, s{S_SPIN}, 1
        s_waitcnt vmcnt(0)
        v_cmp_ne_u32 vcc, s{S_TAG}, v13
        s_cmp_gt_u32 s{S_SPIN}, SPIN_MAX
        s_cbranch_scc1 {e}
        s_cbranch_vccnz {l}
        {e}:
        """)

    def typeA(self):
        P = self.P
        pitch = 3584
        P(f"""
        s_mov_b32 s{S_W}, s{S_W1}
        s_mov_b32 s{S_W+1}, s{S_W1+1}
        s_mov_b32 s{S_W+2}, 0x1c0000
        s_mul_i32 s{S_T0}, s{S_CG}, 7
        s_lshr_b32 s{S_T0}, s{S_T0}, 1
        s_lshl_b32 s{S_T0}, s{S_T0}, 7
        s_mul_i32 s{S_WOFF}, s{S_WAVE}, {8*pitch}
        s_add_u32 s{S_WOFF}, s{S_WOFF}, s{S_T0}
        v_mul_u32_u24 v4, {pitch}, v7
        v_add_u32 v4, v4, v10
        """)
        P(f"""
        s_or_b32 s{S_T0}, s2, s{S_WAVE}
        s_cmp_lg_u32 s{S_T0}, 0
        s_cbranch_scc1 L_NOLEAD
        s_memrealtime s[{S_EX}:{S_EX+1}]
        v_mov_b32 v12, 0
        s_waitcnt lgkmcnt(0)
        s_or_b32 s{S_T0}, s{S_EX}, 1
        v_mov_b32 v13, s{S_T0}
        s_mov_b64 exec, 1
        global_store_dword v12, v13, s[{S_DBG}:{S_DBG+1}] sc1
        s_mov_b64 exec, -1
        L_NOLEAD:
        s_cmp_lg_u32 s{S_P}, 0
        s_cbranch_scc1 L_A3
        """)
        def consts(grp):
            def f():
                P(f"""
                s_and_b32 s{S_T0}, s{S_CG}, 1
                s_lshl_b32 s{S_T1}, s{S_T0}, 6
                v_xor_b32 v12, s{S_T1}, v7
                v_add_u32 v12, {0x4000 + grp*16384}, v12
                v_xor_b32 v13, 64, v12
                s_lshl_b32 s{S_T1}, s{S_T0}, 13
                v_add_u32 v13, s{S_T1}, v13
                """)
            return f
        offs = [0, 128, 256, 384]
        for grp, nt in ((0, 4), (1, 3)):
            if grp == 1: P.label("L_A3")
            self.type_consts = consts(grp)
            tiles = [(12, 0, 0), (13, 0, 0), (12, 8192, 0), (13, 8192, 0)][:nt]
            self.phase1(tiles, offs, pitch, [0, 1, 2, 3] if grp == 1 else [], False)
            self.cs_stride = 128
            P(f"s_mov_b32 s{S_T2}, {T_CS + grp*512}")
            self.stats_tables(nt, S_T2, grp == 1)
            self.epiA(nt, grp)
            if grp == 0: P("s_branch L_A_DONE")
        P.label("L_A_DONE")
        self.stamp(3)

    def epiA(self, nt, grp):
        P = self.P
        P(f"""
        v_lshlrev_b32 v32, 5, v22
        v_add_u32 v32, {T_CS + grp*512}, v32
        v_mul_f32 v33, {f2u(-LOG2E):#x}, v30
        """)
        P(f"""
        s_lshl_b32 s{S_T0}, s{S_RB}, 2
        s_add_u32 s{S_T0}, s{S_T0}, s{S_R}
        s_mul_i32 s{S_T0}, s{S_T0}, 144
        s_mul_i32 s{S_T1}, s{S_CG}, 14
        s_add_u32 s{S_T0}, s{S_T0}, s{S_T1}
        s_add_u32 s{S_T0}, s{S_T0}, {8*grp}
        s_lshl_b32 s{S_AOFF}, s{S_T0}, 10
        """)
        CS = [128, 144]
        def rd(i):
            b = CS[i & 1]
            for q in range(4):
                P(f"ds_read_b128 {vr(b+4*q,4)}, v32 offset:{i*128 + (q>>1)*64 + (q&1)*16}")
        rd(0)
        for i in range(nt):
            if i + 1 < nt:
                rd(i + 1); P("s_waitcnt lgkmcnt(4)")
            else:
                P("s_waitcnt lgkmcnt(0)")
            self.stamp(f"ea{i}")
            acc = 64 + 16*i; cs = CS[i & 1]; E = 160; O = 176 + 8*(i & 1)
            for j in range(16): P(f"v_fma_f32 v{acc+j}, -v28, v{cs+j}, v{acc+j}")
            for j in range(16): P(f"v_mul_f32 v{E+j}, v33, v{acc+j}")
            for j in range(16): P(f"v_exp_f32 v{E+j}, v{E+j}")
            for j in range(16): P(f"v_fma_f32 v{E+j}, v{E+j}, v31, v31")
            for j in range(16): P(f"v_rcp_f32 v{E+j}, v{E+j}")
            for j in range(16): P(f"v_mul_f32 v{acc+j}, v{acc+j}, v{E+j}")
            for j in range(8): P(f"v_cvt_pk_bf16_f32 v{O+j}, v{acc+2*j}, v{acc+2*j+1}")
            self.stamp(f"eb{i}")
            so = f"s{S_AOFF}"
            if i >= 2:
                P(f"s_add_u32 s{S_T1}, s{S_AOFF}, 4096"); so = f"s{S_T1}"
            for a in range(2):
                P(f"buffer_store_dwordx4 {vr(O+4*a,4)}, v6, {srd(S_WS)}, {so} offen offset:{((2*i+a)&3)*1024} sc1")

    def softmax(self, Pr, out, tmp):
        P = self.P
        m = tmp
        P(f"v_max3_f32 v{m}, v{Pr}, v{Pr+1}, v{Pr+2}")
        P(f"v_max3_f32 v{m+1}, v{Pr+3}, v{Pr+4}, v{Pr+5}")
        P(f"v_max3_f32 v{m+2}, v{Pr+6}, v{Pr+7}, v{Pr+8}")
        P(f"v_max3_f32 v{m}, v{m}, v{Pr+9}, v{Pr+10}")
        P(f"v_max3_f32 v{m+1}, v{m+1}, v{Pr+11}, v{Pr+12}")
        P(f"v_max3_f32 v{m+2}, v{m+2}, v{Pr+13}, v{Pr+14}")
        P(f"v_max3_f32 v{m}, v{m}, v{m+1}, v{Pr+15}")
        P(f"v_max_f32 v{m}, v{m}, v{m+2}")
        P(f"v_mul_f32 v{m}, {f2u(-LOG2E):#x}, v{m}")
        for j in range(16): P(f"v_fma_f32 v{Pr+j}, v{Pr+j}, s{S_T3}, v{m}")
        for j in range(16): P(f"v_exp_f32 v{Pr+j}, v{Pr+j}")
        P(f"v_add_f32 v{m}, v{Pr}, v{Pr+1}")
        P(f"v_add_f32 v{m+1}, v{Pr+2}, v{Pr+3}")
        for j in range(4, 16, 2):
            P(f"v_add_f32 v{m}, v{m}, v{Pr+j}")
            P(f"v_add_f32 v{m+1}, v{m+1}, v{Pr+j+1}")
        P(f"v_add_f32 v{m}, v{m}, v{m+1}")
        P(f"v_rcp_f32 v{m}, v{m}")
        for j in range(16): P(f"v_mul_f32 v{Pr+j}, v{Pr+j}, v{m}")
        for j in range(8): P(f"v_cvt_pk_bf16_f32 v{out+j}, v{Pr+2*j}, v{Pr+2*j+1}")

    def typeB(self):
        P = self.P
        pitch = 3072
        P.label("L_TYPEB")
        P(f"""
        s_mov_b32 s{S_W}, s{S_WQKV}
        s_mov_b32 s{S_W+1}, s{S_WQKV+1}
        s_mov_b32 s{S_W+2}, 0x180000
        s_lshl_b32 s{S_T0}, s{S_CG}, 7
        s_mul_i32 s{S_WOFF}, s{S_WAVE}, {8*pitch}
        s_add_u32 s{S_WOFF}, s{S_WOFF}, s{S_T0}
        v_mul_u32_u24 v4, {pitch}, v7
        v_add_u32 v4, v4, v10
        """)
        P(f"""
        s_cmp_gt_u32 s{S_WAVE}, 1
        s_cbranch_scc1 L_NOPHI
        s_lshl_b32 s{S_T0}, s{S_CG}, 11
        s_lshl_b32 s{S_T1}, s{S_WAVE}, 10
        s_add_u32 s{S_T0}, s{S_T0}, s{S_T1}
        s_add_u32 s{S_EX}, s{S_PHI}, s{S_T0}
        s_addc_u32 s{S_EX+1}, s{S_PHI+1}, 0
        s_add_u32 m0, s{S_T1}, {T_PHI}
        s_nop 0
        global_load_lds_dwordx4 v6, s[{S_EX}:{S_EX+1}]
        L_NOPHI:
        """)
        def consts():
            P(f"""
            s_lshl_b32 s{S_T1}, s{S_P}, 6
            v_xor_b32 v12, s{S_T1}, v7
            v_add_u32 v12, 0x4000, v12
            v_mov_b32 v13, v12
            """)
        self.type_consts = consts
        tiles = [(12, 0, 0), (12, 8192, 0), (12, 16384, 1)]
        self.phase1(tiles, [0, 1024, 2048], pitch, [0, 1, 2, 3], True)
        self.cs_stride = 256
        P(f"s_lshl_b32 s{S_T2}, s{S_P}, 7\ns_add_u32 s{S_T2}, s{S_T2}, {T_CS}")
        WP = 128
        P(f"""
        v_bfe_u32 v32, v1, 2, 2
        v_lshl_add_u32 v32, v22, 3, v32
        v_lshlrev_b32 v32, 5, v32
        v_bfe_u32 v33, v1, 4, 1
        v_lshl_add_u32 v32, v33, 4, v32
        v_bfe_u32 v33, v1, 1, 1
        v_lshl_add_u32 v32, v33, 3, v32
        s_lshl_b32 s{S_T0}, s{S_P}, 10
        s_add_u32 s{S_T0}, s{S_T0}, {T_PHI}
        v_add_u32 v32, s{S_T0}, v32
        ds_read_b64_tr_b16 v[{WP}:{WP+1}], v32
        ds_read_b64_tr_b16 v[{WP+2}:{WP+3}], v32 offset:128
        ds_read_b64_tr_b16 v[{WP+4}:{WP+5}], v32 offset:512
        ds_read_b64_tr_b16 v[{WP+6}:{WP+7}], v32 offset:640
        """)
        self.stats_tables(3, S_T2, True)
        P(f"""
        v_bfe_u32 v33, v1, 2, 1
        v_mul_u32_u24 v33, 0x8000, v33
        v_lshl_or_b32 v33, v33, 16, v33
        """)
        for j in range(8): P(f"v_xor_b32 v{WP+j}, v33, v{WP+j}")
        SEL = 136
        P(f"""
        v_lshlrev_b32 v33, 4, v22
        v_sub_u32 v33, v21, v33
        v_mov_b32 v34, 0x3f80
        v_mov_b32 v35, 0x3f800000
        """)
        for j in range(8):
            P(f"""
            v_cmp_eq_u32 vcc, {2*j}, v33
            v_cndmask_b32 v{SEL+j}, 0, v34, vcc
            v_cmp_eq_u32 vcc, {2*j+1}, v33
            v_cndmask_b32 v{SEL+j}, v{SEL+j}, v35, vcc
            """)
        P(f"""
        v_mul_f32 v29, v30, v28
        ds_write_b32 v27, v30 offset:{T_RM - T_SUM}
        ds_write_b32 v27, v29 offset:{T_RM - T_SUM + 512}
        v_lshlrev_b32 v32, 5, v22
        v_add_u32 v32, s{S_T2}, v32
        s_lshl_b32 s{S_T0}, s{S_R}, 7
        s_add_u32 s{S_T0}, s{S_T0}, {T_RM}
        v_lshlrev_b32 v34, 4, v22
        v_add_u32 v34, s{S_T0}, v34
        s_mov_b32 s{S_T3}, {f2u(LOG2E):#x}
        """)
        CSK, CSQ, RR, RM = 144, 160, 176, 192
        for q in range(4): P(f"ds_read_b128 {vr(CSK+4*q,4)}, v32 offset:{256 + (q>>1)*64 + (q&1)*16}")
        P(f"ds_read_b32 v35, v26 offset:512")
        for q in range(4): P(f"ds_read_b128 {vr(RR+4*q,4)}, v34 offset:{q*32}")
        for q in range(4): P(f"ds_read_b128 {vr(RM+4*q,4)}, v34 offset:{512 + q*32}")
        P("s_waitcnt lgkmcnt(9)")
        AQ, AK, AV = 64, 80, 96
        KB = 208
        for j in range(16): P(f"v_fma_f32 v{AK+j}, -v28, v{CSK+j}, v{AK+j}")
        for j in range(16): P(f"v_mul_f32 v{AK+j}, v30, v{AK+j}")
        for j in range(8): P(f"v_cvt_pk_bf16_f32 v{KB+j}, v{AK+2*j}, v{AK+2*j+1}")
        PK0, PK1 = 216, 232
        P(f"v_mfma_f32_32x32x16_bf16 {vr(PK0,16)}, {vr(WP,4)}, {vr(KB,4)}, 0")
        P(f"v_mfma_f32_32x32x16_bf16 {vr(PK1,16)}, {vr(WP+4,4)}, {vr(KB+4,4)}, 0")
        for q in range(4): P(f"ds_read_b128 {vr(CSQ+4*q,4)}, v32 offset:{(q>>1)*64 + (q&1)*16}")
        P("s_waitcnt lgkmcnt(4)")
        for j in range(16): P(f"v_mul_f32 v{RM+j}, v35, v{RM+j}")
        for j in range(16): P(f"v_fma_f32 v{AV+j}, v{AV+j}, v{RR+j}, -v{RM+j}")
        VB0, VB1 = 176, 184
        for j in range(8): P(f"v_cvt_pk_bf16_f32 v{VB1+j}, v{AV+2*j}, v{AV+2*j+1}")
        P(f"v_bfe_i32 v36, v1, 4, 1\nv_not_b32 v37, v36")
        for j in range(8): P(f"v_and_b32 v{VB0+j}, v37, v{VB1+j}")
        for j in range(8): P(f"v_and_b32 v{VB1+j}, v36, v{VB1+j}")
        PH = 192
        TT = 80
        PT = 200
        KV = 96
        for a, PKa, VBa in ((0, PK0, VB0), (1, PK1, VB1)):
            self.softmax(PKa, PH, 38)
            P(f"v_mfma_f32_32x32x16_bf16 {vr(TT,16)}, {vr(PH,4)}, {vr(SEL,4)}, 0")
            P(f"v_mfma_f32_32x32x16_bf16 {vr(TT,16)}, {vr(PH+4,4)}, {vr(SEL+4,4)}, {vr(TT,16)}")
            for j in range(8): P(f"v_cvt_pk_bf16_f32 v{PT+j}, v{TT+2*j}, v{TT+2*j+1}")
            P(f"v_mfma_f32_32x32x16_bf16 {vr(KV,16)}, {vr(PT,4)}, {vr(VBa,4)}, {'0' if a == 0 else vr(KV,16)}")
            P(f"v_mfma_f32_32x32x16_bf16 {vr(KV,16)}, {vr(PT+4,4)}, {vr(VBa+4,4)}, {vr(KV,16)}")
            z = 41 + a
            P(f"v_add_f32 v{z}, v{TT}, v{TT+1}\nv_add_f32 v43, v{TT+2}, v{TT+3}")
            for j in range(4, 16, 2):
                P(f"v_add_f32 v{z}, v{z}, v{TT+j}\nv_add_f32 v43, v43, v{TT+j+1}")
            P(f"v_add_f32 v{z}, v{z}, v43")
        P(f"""
        s_lshl_b32 s{S_T0}, s{S_P}, 8
        s_add_u32 s{S_T0}, s{S_T0}, {T_Z}
        v_lshlrev_b32 v43, 2, v21
        v_add_u32 v43, s{S_T0}, v43
        ds_add_f32 v43, v41
        ds_add_f32 v43, v42 offset:128
        s_mul_i32 s{S_T0}, s{S_P}, {SLOT}
        s_add_u32 s{S_T0}, s{S_T0}, 0x8000
        s_lshl_b32 s{S_T1}, s{S_R}, 12
        s_add_u32 s{S_T1}, s{S_T1}, s{S_T0}
        v_add_u32 v44, s{S_T1}, v6
        s_lshl_b32 s{S_T1}, s{S_R}, 10
        s_add_u32 s{S_T1}, s{S_T1}, s{S_T0}
        v_add_u32 v45, s{S_T1}, v6
        """)
        for i in range(4): P(f"ds_write_b128 v44, {vr(KV+4*i,4)} offset:{i*1024}")
        P("s_waitcnt lgkmcnt(0)\ns_barrier")
        for rr in range(4): P(f"ds_read_b128 {vr(216+4*rr,4)}, v45 offset:{rr*4096}")
        P(f"v_lshlrev_b32 v46, 3, v1\nv_add_u32 v47, {T_Z}, v46\nds_read_b64 v[232:233], v47")
        self.get_tag()
        P("s_waitcnt lgkmcnt(0)")
        for j in range(4):
            P(f"v_add_f32 v{216+j}, v{216+j}, v{220+j}\nv_add_f32 v{224+j}, v{224+j}, v{228+j}")
        for j in range(4): P(f"v_add_f32 v{216+j}, v{216+j}, v{224+j}")
        P(f"""
        v_cvt_pk_bf16_f32 v220, v216, v217
        v_cvt_pk_bf16_f32 v221, v218, v219
        s_lshl_b32 s{S_T0}, s{S_CG}, 4
        s_add_u32 s{S_T0}, s{S_T0}, s{S_RB}
        s_mul_i32 s{S_T0}, s{S_T0}, {KVP_SZ}
        s_add_u32 s{S_T0}, s{S_T0}, {WS_KVP}
        s_lshl_b32 s{S_T1}, s{S_WAVE}, 9
        s_add_u32 s{S_T1}, s{S_T1}, s{S_T0}
        buffer_store_dwordx2 v[220:221], v46, {srd(S_WS)}, s{S_T1} offen sc1
        s_cmp_lg_u32 s{S_WAVE}, 0
        s_cbranch_scc1 L_NOZ
        s_add_u32 s{S_T0}, s{S_T0}, 4096
        buffer_store_dwordx2 v[232:233], v46, {srd(S_WS)}, s{S_T0} offen sc1
        L_NOZ:
        """)
        QB = 208
        for j in range(16): P(f"v_fma_f32 v{AQ+j}, -v28, v{CSQ+j}, v{AQ+j}")
        for j in range(16): P(f"v_mul_f32 v{AQ+j}, v30, v{AQ+j}")
        for j in range(8): P(f"v_cvt_pk_bf16_f32 v{QB+j}, v{AQ+2*j}, v{AQ+2*j+1}")
        P(f"v_mfma_f32_32x32x16_bf16 {vr(80,16)}, {vr(WP,4)}, {vr(QB,4)}, 0")
        P(f"v_mfma_f32_32x32x16_bf16 {vr(96,16)}, {vr(WP+4,4)}, {vr(QB+4,4)}, 0")
        self.softmax(80, 48, 38)
        def fo():
            P(f"""
            s_lshl_b32 s{S_T1}, s{S_CG}, 7
            s_lshl_b32 s{S_T2}, s{S_RB}, 2
            s_add_u32 s{S_T1}, s{S_T1}, s{S_T2}
            s_add_u32 s{S_T1}, s{S_T1}, {WS_FL + 0x2000}
            """)
        self.publish(0, 0, fo)
        self.softmax(96, 56, 38)
        self.stamp(3)

    def o_phase(self):
        P = self.P
        def po():
            P(f"s_lshl_b32 s{S_T1}, s{S_CG}, 7\ns_add_u32 s{S_T1}, s{S_T1}, {WS_FL + 0x2000}")
        self.poll(16, po)
        self.stamp(6)
        P(f"""
        v_mul_u32_u24 v16, {KVP_SZ}, v22
        v_lshl_add_u32 v16, v21, 4, v16
        s_mul_i32 s{S_T0}, s{S_CG}, {16*KVP_SZ}
        s_add_u32 s{S_T0}, s{S_T0}, {WS_KVP}
        s_lshl_b32 s{S_T1}, s{S_WAVE}, 9
        s_add_u32 s{S_T1}, s{S_T1}, s{S_T0}
        """)
        LD = 64
        for j in range(8):
            P(f"buffer_load_dwordx4 {vr(LD+4*j,4)}, v16, {srd(S_WS)}, s{S_T1} offen sc1")
            if j < 7: P(f"s_add_u32 s{S_T1}, s{S_T1}, {2*KVP_SZ}")
        P(f"""
        v_lshrrev_b32 v17, 3, v1
        v_mul_u32_u24 v17, {KVP_SZ}, v17
        v_and_b32 v18, 7, v1
        v_lshlrev_b32 v18, 4, v18
        v_add_u32 v17, v17, v18
        s_and_b32 s{S_T1}, s{S_WAVE}, 1
        s_mul_i32 s{S_T1}, s{S_T1}, {8*KVP_SZ}
        s_add_u32 s{S_T1}, s{S_T1}, s{S_T0}
        s_lshr_b32 s{S_T2}, s{S_WAVE}, 1
        s_lshl_b32 s{S_T3}, s{S_T2}, 7
        s_add_u32 s{S_T1}, s{S_T1}, s{S_T3}
        s_add_u32 s{S_T1}, s{S_T1}, 4096
        buffer_load_dwordx4 v[96:99], v17, {srd(S_WS)}, s{S_T1} offen sc1
        s_mul_i32 s{S_T2}, s{S_T2}, {17*144}
        s_add_u32 s{S_T2}, s{S_T2}, {T_KV + 16*144}
        v_add_u32 v18, s{S_T2}, v18
        """)
        P(f"""
        v_lshl_or_b32 v19, v21, 1, v22
        v_and_b32 v24, 3, v19
        v_and_b32 v25, 4, v19
        v_lshl_or_b32 v24, v25, 1, v24
        v_and_b32 v25, 8, v19
        v_lshrrev_b32 v25, 1, v25
        v_or_b32 v24, v24, v25
        v_bfe_u32 v25, v19, 4, 1
        v_mad_u32_u24 v24, v25, 17, v24
        v_mul_u32_u24 v24, 144, v24
        v_lshrrev_b32 v25, 5, v19
        v_lshl_add_u32 v24, v25, 4, v24
        s_mul_i32 s{S_T0}, s{S_P}, {34*144}
        s_lshl_b32 s{S_T1}, s{S_R}, 5
        s_add_u32 s{S_T0}, s{S_T0}, s{S_T1}
        s_add_u32 s{S_T0}, s{S_T0}, {T_KV}
        v_add_u32 v24, s{S_T0}, v24
        """)
        S = 32
        for j in range(8):
            P(f"s_waitcnt vmcnt({8-j})")
            for k in range(4):
                src = LD + 4*j + k
                if j == 0:
                    P(f"v_lshlrev_b32 v{S+2*k}, 16, v{src}\nv_and_b32 v{S+2*k+1}, 0xffff0000, v{src}")
                else:
                    P(f"v_lshlrev_b32 v40, 16, v{src}\nv_and_b32 v41, 0xffff0000, v{src}")
                    P(f"v_add_f32 v{S+2*k}, v{S+2*k}, v40\nv_add_f32 v{S+2*k+1}, v{S+2*k+1}, v41")
        for k in range(4): P(f"v_permlane32_swap_b32 v{S+k}, v{S+4+k}")
        for k in range(4): P(f"v_add_f32 v{S+k}, v{S+k}, v{S+4+k}")
        P(f"ds_write_b128 v24, {vr(S,4)}")
        P("s_waitcnt vmcnt(0)")
        for k in range(4): P(f"ds_add_f32 v18, v{96+k} offset:{4*k}")
        P(f"""
        v_and_b32 v24, 3, v1
        v_and_b32 v25, 4, v1
        v_lshl_or_b32 v24, v25, 1, v24
        v_and_b32 v25, 8, v1
        v_lshrrev_b32 v25, 1, v25
        v_or_b32 v24, v24, v25
        v_cmp_gt_u32 vcc, 16, v21
        v_cndmask_b32 v24, 16, v24, vcc
        v_mul_u32_u24 v24, 144, v24
        v_lshl_add_u32 v24, v22, 6, v24
        s_mul_i32 s{S_T0}, s{S_P}, {34*144}
        s_add_u32 s{S_T0}, s{S_T0}, {T_KV}
        v_add_u32 v24, s{S_T0}, v24
        s_lshl_b32 s{S_T0}, s{S_RB}, 2
        s_add_u32 s{S_T0}, s{S_T0}, s{S_R}
        s_mul_i32 s{S_T0}, s{S_T0}, 144
        s_lshl_b32 s{S_T1}, s{S_CG}, 2
        s_add_u32 s{S_T0}, s{S_T0}, s{S_T1}
        s_lshl_b32 s{S_T1}, s{S_P}, 1
        s_add_u32 s{S_T0}, s{S_T0}, s{S_T1}
        s_add_u32 s{S_T0}, s{S_T0}, 112
        s_lshl_b32 s{S_AOFF}, s{S_T0}, 10
        s_waitcnt lgkmcnt(0)
        s_barrier
        """)
        for a in range(2):
            for q in range(4): P(f"ds_read_b128 {vr(64+16*a+4*q,4)}, v24 offset:{a*17*144 + 16*q}")
        for a in range(2):
            P(f"s_waitcnt lgkmcnt({4-4*a})")
            for j in range(8): P(f"v_cvt_pk_bf16_f32 v{16+8*a+j}, v{64+16*a+2*j}, v{64+16*a+2*j+1}")
        for a in range(2):
            O = 64 + 16*a
            P(f"v_mfma_f32_32x32x16_bf16 {vr(O,16)}, {vr(16+8*a,4)}, {vr(48+8*a,4)}, 0")
            P(f"v_mfma_f32_32x32x16_bf16 {vr(O,16)}, {vr(20+8*a,4)}, {vr(52+8*a,4)}, {vr(O,16)}")
        for a in range(2):
            O = 64 + 16*a
            P(f"v_add_f32 v{O+8}, {f2u(1e-6):#x}, v{O+8}\nv_rcp_f32 v{O+8}, v{O+8}")
            for j in range(8): P(f"v_mul_f32 v{O+j}, v{O+j}, v{O+8}")
            for j in range(4): P(f"v_cvt_pk_bf16_f32 v{32+4*a+j}, v{O+2*j}, v{O+2*j+1}")
            P(f"buffer_store_dwordx4 {vr(32+4*a,4)}, v6, {srd(S_WS)}, s{S_AOFF} offen offset:{a*1024} sc1")
        def fo():
            P(f"""
            s_lshl_b32 s{S_T1}, s{S_RB}, 7
            s_lshl_b32 s{S_T2}, s{S_CG}, 2
            s_add_u32 s{S_T1}, s{S_T1}, s{S_T2}
            s_add_u32 s{S_T1}, s{S_T1}, {WS_FL + 0x1000}
            """)
        self.publish(0, 8, fo)
        P("v_and_b32 v21, 31, v1\nv_lshrrev_b32 v22, 5, v1")

    def bstage(self, isA):
        P = self.P
        P(f"""
        s_lshl_b32 s{S_T0}, s{S_P}, 6
        v_xor_b32 v8, s{S_T0}, v7
        s_lshl_b32 s{S_T0}, s{S_R}, 13
        v_add_u32 v8, s{S_T0}, v8
        v_add_u32 v9, {SLOT}, v8
        v_add_u32 v10, {2*SLOT}, v8
        """)
        def rd(j):
            b = 8 + (8 + j) % 3
            for st in range(4):
                d = 112 + 16*j + 4*st
                P(f"ds_read_b64_tr_b16 {vr(d,2)}, v{b} offset:{st*2048}")
                P(f"ds_read_b64_tr_b16 {vr(d+2,2)}, v{b} offset:{st*2048+512}")
        if isA:
            self.get_tag()
            def fo():
                P(f"""
                s_lshl_b32 s{S_T1}, s{S_RB}, 7
                s_lshl_b32 s{S_T2}, s{S_CG}, 2
                s_add_u32 s{S_T1}, s{S_T1}, s{S_T2}
                s_add_u32 s{S_T1}, s{S_T1}, {WS_FL}
                """)
            self.publish(0, 4, fo)
        P("s_waitcnt vmcnt(0)\ns_barrier")
        self.stamp(4)
        rd(0); P("s_waitcnt lgkmcnt(0)"); rd(1); P("s_waitcnt lgkmcnt(0)"); rd(2)
        P("s_waitcnt lgkmcnt(0)\ns_barrier")
        for j in (3, 4, 5):
            for d in self.dma_list_b(j, ((8 + j) % 3) * SLOT): P(d)
        for j in range(3, 9):
            younger = 4 * (min(j + 2, 8) - j)
            P(f"s_waitcnt vmcnt({younger})\ns_barrier")
            rd(j)
            P("s_waitcnt lgkmcnt(0)")
            if j + 3 < 9:
                P("s_barrier")
                for d in self.dma_list_b(j + 3, ((8 + j) % 3) * SLOT): P(d)
        self.stamp(5)

    def phase2(self):
        P = self.P
        ASL = 32768
        P(f"""
        s_lshl_b32 s{S_T0}, s{S_RB2}, 2
        s_lshl_b32 s{S_T1}, s{S_RH}, 1
        s_add_u32 s{S_T0}, s{S_T0}, s{S_T1}
        s_add_u32 s{S_T0}, s{S_T0}, s{S_P}
        s_mul_i32 s{S_T0}, s{S_T0}, 144
        s_mul_i32 s{S_T1}, s{S_R}, 28
        s_add_u32 s{S_T1}, s{S_T1}, s{S_T0}
        s_lshl_b32 s{S_AOFF}, s{S_T1}, 10
        s_lshl_b32 s{S_T1}, s{S_R}, 3
        s_add_u32 s{S_T1}, s{S_T1}, s{S_T0}
        s_add_u32 s{S_T1}, s{S_T1}, 112
        s_lshl_b32 s{S_KX}, s{S_T1}, 10
        s_lshl_b32 s{S_LA}, s{S_R}, 13
        s_lshl_b32 s{S_T1}, s{S_P}, 12
        s_add_u32 s{S_LA}, s{S_LA}, s{S_T1}
        s_lshl_b32 s{S_T1}, s{S_R}, 13
        v_add_u32 v8, s{S_T1}, v6
        v_add_u32 v9, 0x10000, v8
        """)
        P(f"""
        s_lshl_b32 s{S_T0}, s{S_RB2}, 17
        s_lshl_b32 s{S_T1}, s{S_RH}, 16
        s_add_u32 s{S_T0}, s{S_T0}, s{S_T1}
        s_lshr_b32 s{S_T1}, s{S_R}, 1
        s_lshl_b32 s{S_T1}, s{S_T1}, 15
        s_add_u32 s{S_T0}, s{S_T0}, s{S_T1}
        s_lshl_b32 s{S_T1}, s{S_C}, 7
        s_add_u32 s{S_T0}, s{S_T0}, s{S_T1}
        s_lshl_b32 s{S_T1}, s{S_P}, 6
        s_add_u32 s{S_T0}, s{S_T0}, s{S_T1}
        s_and_b32 s{S_T1}, s{S_R}, 1
        s_lshl_b32 s{S_T1}, s{S_T1}, 5
        s_add_u32 s{S_KW}, s{S_T0}, s{S_T1}
        v_lshlrev_b32 v10, 10, v21
        v_lshl_add_u32 v10, v22, 4, v10
        buffer_load_dwordx4 v[2:5], v10, {srd(S_X)}, s{S_KW} offen
        """)
        def ph():
            P(f"s_lshl_b32 s{S_T1}, s{S_RB2}, 7\ns_add_u32 s{S_T1}, s{S_T1}, {WS_FL}")
        self.poll(8, ph)
        P("s_barrier")
        self.stamp(7)
        def dma(j):
            base, off = (S_AOFF, j*4096) if j < 7 else (S_KX, (j-7)*4096)
            P(f"s_add_u32 m0, s{S_LA}, {(j % 4) * ASL}\ns_add_u32 s{S_T1}, s{base}, {off}")
            for f in range(4):
                P(f"buffer_load_dwordx4 v6, {srd(S_WS)}, s{S_T1} offen offset:{f*1024} sc1 lds")
        def compute(j):
            accb = 48 if j < 7 else 80
            ar = 8 + ((j % 4) >> 1); ao = ((j % 4) & 1) * ASL
            for st in range(4):
                for rt in range(2):
                    P(f"ds_read_b128 {vr(16+8*st+4*rt,4)}, v{ar} offset:{ao + rt*4096 + st*1024}")
            for st in range(4):
                P(f"s_waitcnt lgkmcnt({6-2*st})")
                for rt in range(2):
                    acc = vr(accb + 16*rt, 16)
                    first = (j in (0, 7)) and st == 0
                    P(f"v_mfma_f32_32x32x16_bf16 {acc}, {vr(112+16*j+4*st,4)}, {vr(16+8*st+4*rt,4)}, {'0' if first else acc}")
        for j in range(3): dma(j)
        for j in range(7):
            younger = 4 * (min(j + 2, 6) - j)
            P(f"s_waitcnt vmcnt({younger})\ns_barrier")
            if j + 3 < 7: dma(j + 3)
            compute(j)
        def po():
            P(f"s_lshl_b32 s{S_T1}, s{S_RB2}, 7\ns_add_u32 s{S_T1}, s{S_T1}, {WS_FL + 0x1000}")
        self.stamp(8)
        self.poll(8, po)
        self.stamp(9)
        dma(7); dma(8)
        P("s_barrier")
        self.red_addr()
        self.red_write(48, 0x8000, 16)
        P(f"s_waitcnt vmcnt(4) lgkmcnt(0)\ns_barrier")
        self.red_read(112, 0x8000)
        compute2 = compute
        compute(7)
        P(f"s_waitcnt vmcnt(0)\ns_barrier")
        compute(8)
        self.red_sum(136, 112)
        for j in range(8): P(f"v_mul_f32 v{112+j}, {f2u(-LOG2E):#x}, v{136+j}")
        for j in range(8): P(f"v_exp_f32 v{112+j}, v{112+j}")
        for j in range(8): P(f"v_add_f32 v{112+j}, 1.0, v{112+j}")
        for j in range(8): P(f"v_rcp_f32 v{112+j}, v{112+j}")
        for j in range(8): P(f"v_mul_f32 v{136+j}, v{136+j}, v{112+j}")
        self.red_write(80, 0x8000, 16, own=144)
        P(f"s_waitcnt lgkmcnt(0)\ns_barrier")
        self.red_read(112, 0x8000)
        P("s_waitcnt lgkmcnt(0)")
        self.red_sum(144, 112)
        for k in range(4):
            P(f"v_lshlrev_b32 v{152+2*k}, 16, v{2+k}\nv_and_b32 v{153+2*k}, 0xffff0000, v{2+k}")
        for j in range(8): P(f"v_fma_f32 v{152+j}, v{144+j}, v{136+j}, v{152+j}")
        for k in range(4): P(f"v_cvt_pk_bf16_f32 v{160+k}, v{152+2*k}, v{153+2*k}")
        P(f"buffer_store_dwordx4 v[160:163], v10, {srd(S_OUT)}, s{S_KW} offen")
        self.stamp(10)

    def red_addr(self):
        P = self.P
        P(f"""
        s_lshl_b32 s{S_T0}, s{S_P}, 15
        s_lshl_b32 s{S_T1}, s{S_R}, 11
        s_add_u32 s{S_T1}, s{S_T1}, s{S_T0}
        v_add_u32 v11, s{S_T1}, v6
        s_lshl_b32 s{S_T2}, s{S_R}, 13
        v_add_u32 v12, s{S_T2}, v11
        v_xor_b32 v13, 0x1000, v12
        v_xor_b32 v14, 0x1800, v12
        v_xor_b32 v12, 0x800, v12
        """)
    def red_write(self, acc, base, _, own=136):
        P = self.P
        for pc in range(4):
            l1 = self.lab("RW"); l2 = self.lab("RW")
            r = acc + 8*pc
            P(f"s_cmp_eq_u32 s{S_R}, {pc}\ns_cbranch_scc1 {l1}")
            P(f"ds_write_b128 v11, {vr(r,4)} offset:{base + pc*8192}")
            P(f"ds_write_b128 v11, {vr(r+4,4)} offset:{base + pc*8192 + 1024}")
            P(f"s_branch {l2}")
            P.label(l1)
            for j in range(8): P(f"v_mov_b32 v{own+j}, v{r+j}")
            P.label(l2)
    def red_read(self, dst, base):
        P = self.P
        for k in range(3):
            P(f"ds_read_b128 {vr(dst+8*k,4)}, v{12+k} offset:{base}")
            P(f"ds_read_b128 {vr(dst+8*k+4,4)}, v{12+k} offset:{base+1024}")
    def red_sum(self, own, src):
        P = self.P
        for j in range(8): P(f"v_add_f32 v{own+j}, v{own+j}, v{src+j}")
        for j in range(8): P(f"v_add_f32 v{src+8+j}, v{src+8+j}, v{src+16+j}")
        for j in range(8): P(f"v_add_f32 v{own+j}, v{own+j}, v{src+8+j}")

    def write_stamps(self):
        P = self.P
        if not self.stamps: return
        amp = [a for a in self.x if a.startswith("amp")]
        if amp:
            wg = int(amp[0][3:])
            P(f"""
            s_waitcnt lgkmcnt(0)
            s_cmp_lg_u32 s2, {wg}
            s_cbranch_scc1 L_END
            s_cmp_lg_u32 s{S_WAVE}, 0
            s_cbranch_scc1 L_END
            s_sub_u32 s{S_T0}, s{S_ST+2}, s{S_ST}
            s_mul_i32 s{S_T0}, s{S_T0}, {100 if 'rt' in self.x else 1}
            s_min_u32 s{S_T0}, s{S_T0}, 400000
            s_memrealtime s[{S_ST+4}:{S_ST+5}]
            L_AMP:
            s_memrealtime s[{S_ST+6}:{S_ST+7}]
            s_waitcnt lgkmcnt(0)
            s_sub_u32 s{S_T1}, s{S_ST+6}, s{S_ST+4}
            s_cmp_lt_u32 s{S_T1}, s{S_T0}
            s_cbranch_scc1 L_AMP
            """)
            return
        P(f"""
        s_memrealtime s[{S_ST+22}:{S_ST+23}]
        s_waitcnt lgkmcnt(0)
        s_lshl_b32 s{S_T0}, s2, 3
        s_add_u32 s{S_T0}, s{S_T0}, s{S_WAVE}
        s_lshl_b32 s{S_T0}, s{S_T0}, 6
        s_add_u32 s{S_T0}, s{S_T0}, {WS_STAMP}
        v_mov_b32 v12, 0
        s_mov_b64 exec, 1
        """)
        for i in range(12):
            P(f"v_mov_b32 v13, s{S_ST+2*i}\nbuffer_store_dword v13, v12, {srd(S_WS)}, s{S_T0} offen offset:{4*i}")

    def build(self):
        P = self.P
        if self.stamps:
            for i in range(12): P(f"s_mov_b32 s{S_ST+2*i}, 0")
        self.prologue()
        self.typeA()
        self.bstage(True)
        P("s_branch L_PH2")
        self.typeB()
        self.bstage(False)
        self.o_phase()
        P.label("L_PH2")
        self.phase2()
        self.write_stamps()
        P.label("L_END")
        P("s_endpgm")
        P.fix_hazards()
        hdr = open("recurrent_scan__linear_kernel_hedgehog__dense_activation_silu__prompt.s.ref").read().split("; Override")[0]
        out = hdr + f"; @launch grid=(256,1,1) block=(512,1,1) lds={LDS_BYTES}\n"
        out += f'.amdgcn_target "amdgcn-amd-amdhsa--gfx950"\n.set SPIN_MAX, 200000\n.set CODE_BYTES, L_CODE_END - {KNAME} - 2048\n.text\n.globl {KNAME}\n.p2align 8\n.type {KNAME},@function\n{KNAME}:\n'
        out += P.text()
        out += ".rept 512\ns_nop 0\n.endr\nL_CODE_END:\ns_endpgm\n"
        out += f""".section .rodata,"a"
.p2align 6
.amdhsa_kernel {KNAME}
  .amdhsa_next_free_vgpr 256
  .amdhsa_next_free_sgpr 102
  .amdhsa_accum_offset 256
  .amdhsa_group_segment_fixed_size 0
  .amdhsa_kernarg_size 80
  .amdhsa_user_sgpr_count 2
  .amdhsa_user_sgpr_kernarg_segment_ptr 1
  .amdhsa_system_sgpr_workgroup_id_x 1
.end_amdhsa_kernel
"""
        return out

if __name__ == "__main__":
    import argparse
    ap = argparse.ArgumentParser()
    ap.add_argument("-o", default="recurrent_scan__linear_kernel_hedgehog__dense_activation_silu__prompt.s")
    ap.add_argument("--stamps", default="")
    ap.add_argument("--stagger", type=int, default=0)
    ap.add_argument("-x", default="")
    a = ap.parse_args()
    open(a.o, "w").write(Gen(stamps=a.stamps.split(",") if a.stamps else None, stagger=a.stagger, x=a.x.split(',')).build())
```

```python
import re

TRANS = ("v_exp_f32", "v_log_f32", "v_rcp_f32", "v_rsq_f32", "v_sqrt_f32", "v_sin_f32", "v_cos_f32", "v_rcp_iflag_f32")

def _regs(tok):
    tok = tok.strip()
    tok = tok.replace("|", "")
    if tok.startswith("-"): tok = tok[1:]
    m = re.fullmatch(r"abs\((.*)\)", tok)
    if m: tok = m.group(1)
    m = re.fullmatch(r"([vsa])\[(\d+):(\d+)\]", tok)
    if m: return {f"{m.group(1)}{i}" for i in range(int(m.group(2)), int(m.group(3)) + 1)}
    m = re.fullmatch(r"([vsa])(\d+)", tok)
    if m: return {tok}
    if tok in ("vcc", "vcc_lo", "vcc_hi"): return {"vcc"}
    if tok in ("exec", "exec_lo", "exec_hi"): return {"exec"}
    if tok == "m0": return {"m0"}
    return set()

class Ins:
    __slots__ = ("text", "op", "ops", "mods", "kind", "wr", "rd", "srcA", "srcB", "srcC", "passes", "data", "target", "ws", "lds", "dpp", "sgpr_rd")
    def __init__(self, text):
        self.text = text
        t = text.split(";")[0].strip()
        parts = t.split(None, 1)
        op = parts[0]
        rest = parts[1] if len(parts) > 1 else ""
        self.op = re.sub(r"_(e32|e64|dpp|sdwa)$", "", op)
        self.dpp = op.endswith("_dpp") or " row_" in t or "quad_perm" in t
        ops = [o.strip() for o in rest.split(",")] if rest else []
        mods = ""
        if ops:
            last = ops[-1].split(None, 1)
            clean = []
            done = False
            for o in ops:
                if done: mods += "," + o; continue
                sp = o.split(None, 1)
                if len(sp) == 2 and not sp[0].startswith("hwreg"):
                    clean.append(sp[0]); mods = sp[1]; done = True
                else:
                    clean.append(o)
            ops = clean
        self.ops = ops; self.mods = mods
        self.wr = set(); self.rd = set(); self.srcA = self.srcB = self.srcC = set(); self.passes = 0
        self.data = set(); self.target = None; self.ws = 1; self.lds = False
        op = self.op
        R = [_regs(o) for o in ops]
        if op.startswith("v_mfma"):
            self.kind = "mfma"
            self.wr = R[0]; self.srcA, self.srcB, self.srcC = R[1], R[2], R[3]
            self.rd = R[1] | R[2] | R[3]
            self.passes = 8 if "32x32" in op else 4
        elif op.startswith("v_"):
            self.kind = "valu"
            nd = 1
            if op in ("v_add_co_u32", "v_sub_co_u32", "v_addc_co_u32", "v_subb_co_u32", "v_subrev_co_u32", "v_mad_u64_u32", "v_div_scale_f32"): nd = 2
            if op == "v_nop": nd = 0
            for r in R[:nd]: self.wr |= r
            for r in R[nd:]: self.rd |= r
            if op.startswith(("v_fmac", "v_dot2c", "v_writelane", "v_pk_fmac")) or self.dpp: self.rd |= R[0]
            if "permlane" in op and "swap" in op:
                self.wr |= R[1]; self.rd |= R[0]
            if op.startswith("v_cmpx"): self.wr |= {"exec"}
            if op == "v_cndmask_b32" and len(ops) == 3: self.rd |= {"vcc"}
        elif op.startswith("ds_"):
            self.kind = "ds"
            if op.startswith("ds_read") or "_rtn" in op or "permute" in op or "swizzle" in op:
                self.wr = R[0]
                for r in R[1:]: self.rd |= r
            else:
                for r in R: self.rd |= r
        elif op.startswith(("buffer_", "global_")):
            self.kind = "vmem"
            self.lds = bool(re.search(r"\blds\b", mods)) or "load_lds" in op
            if op in ("buffer_wbl2", "buffer_inv"):
                pass
            elif "load" in op:
                if self.lds:
                    for r in R: self.rd |= r
                    self.rd |= {"m0"}
                else:
                    self.wr = R[0]
                    for r in R[1:]: self.rd |= r
            elif "store" in op:
                for r in R: self.rd |= r
                d = R[0] if op.startswith("buffer_") else R[1]
                if op.endswith(("x3", "x4")): self.data = d
            elif "atomic" in op:
                for r in R: self.rd |= r
                if re.search(r"\bsc0\b", mods): self.wr = R[0]
        elif op.startswith("s_"):
            self.kind = "salu"
            if op == "s_nop":
                self.ws = int(ops[0], 0) + 1
            elif op.startswith("s_cbranch") or op == "s_branch":
                self.target = ops[0]
            elif op.startswith(("s_cmp", "s_bitcmp", "s_waitcnt", "s_barrier", "s_setprio", "s_sleep", "s_endpgm", "s_setreg")):
                for r in R: self.rd |= r
            else:
                if R: self.wr = R[0]
                for r in R[1:]: self.rd |= r
                if "saveexec" in op: self.wr |= {"exec"}
        else:
            raise ValueError("unknown instruction: " + text)

def need(p, c):
    n = 0
    pv = {r for r in p.wr if r[0] == "v" and r != "vcc" or r[0] == "a"}
    ps = {r for r in p.wr if r[0] == "s" or r == "vcc"}
    if p.kind == "valu":
        isdot = p.op.startswith("v_dot")
        if c.kind == "mfma" and pv & c.rd: n = max(n, 3 if isdot else 2)
        if c.kind == "valu":
            if p.op in TRANS and c.op not in TRANS and pv & c.rd: n = max(n, 1)
            if ps & c.rd:
                n = max(n, 4 if c.op in ("v_readlane_b32", "v_writelane_b32") else 2)
            if c.op in ("v_readlane_b32", "v_readfirstlane_b32") and pv & c.rd: n = max(n, 1)
            if (c.dpp or "permlane" in c.op) and pv & c.rd: n = max(n, 2)
            if isdot:
                if c.op == p.op:
                    ab = set()
                    k = 1
                    for o in c.ops[1:3]: ab |= _regs(o)
                    if pv & ab: n = max(n, 3)
                elif pv & (c.rd | c.wr): n = max(n, 3)
            if "exec" in p.wr:
                n = max(n, 5 if c.dpp else 4 if ("lane" in c.op) else 2 if "exec" in c.rd else 0)
        if c.kind == "mfma" and "exec" in p.wr: n = max(n, 4)
        if c.kind == "vmem" and ps & c.rd: n = max(n, 5)
        if isdot and c.kind in ("vmem", "ds") and pv & c.rd: n = max(n, 3)
    if p.kind == "mfma":
        big = {4: 8, 8: 12}[p.passes]
        if c.kind == "mfma":
            if p.wr & (c.srcA | c.srcB): n = max(n, big)
            if p.wr & c.srcC and not (p.wr == c.srcC and p.passes == c.passes): n = max(n, big - 2)
            if p.wr & c.wr and not (p.wr == c.srcC and p.passes == c.passes): n = max(n, big - 2)
        elif c.kind in ("valu", "vmem", "ds"):
            if p.wr & (c.rd | c.wr): n = max(n, big)
            if c.kind == "valu" and p.srcC & c.wr: n = max(n, {4: 3, 8: 7}[p.passes])
    if p.kind == "salu" and "m0" in p.wr and c.kind == "vmem" and c.lds: n = max(n, 1)
    if p.kind == "vmem" and p.data and (p.data & c.wr): n = max(n, 2 if c.kind in ("valu", "mfma") else 1)
    return n

class Prog:
    def __init__(self):
        self.items = []
    def __call__(self, text):
        for line in text.split("\n"):
            s = line.strip()
            if not s or s.startswith(";"): continue
            if s.endswith(":") and " " not in s: self.items.append(("l", s[:-1]))
            elif s.startswith("."): self.items.append(("d", s))
            else: self.items.append(("i", Ins(s)))
    def label(self, n): self.items.append(("l", n))
    def fix_hazards(self, verbose=False):
        total = 0
        for _ in range(20):
            items = self.items
            lab = {it[1]: i for i, it in enumerate(items) if it[0] == "l"}
            src = {}
            for i, it in enumerate(items):
                if it[0] == "i" and it[1].target is not None:
                    src.setdefault(lab[it[1].target], []).append(i)
            ins_at = {}
            for i, it in enumerate(items):
                if it[0] != "i": continue
                c = it[1]
                if c.kind == "salu": continue
                worst = 0
                stack = [(i - 1, 0)]
                seen = {}
                while stack:
                    j, d = stack.pop()
                    while j >= 0 and d < 13:
                        if seen.get(j, 99) <= d: break
                        seen[j] = d
                        k = items[j]
                        if k[0] == "l":
                            for sidx in src.get(j, []): stack.append((sidx, d))
                        elif k[0] == "i":
                            p = k[1]
                            if p.op in ("s_branch", "s_endpgm") and not (stack_from_branch(j, i, items, seen)):
                                pass
                            nn = need(p, c) - d
                            if nn > worst: worst = nn
                            d += p.ws + ins_at.get(j, 0)
                        if j - 1 >= 0 and items[j - 1][0] == "i" and items[j - 1][1].op in ("s_branch", "s_endpgm"):
                            break
                        j -= 1
                if worst > 0: ins_at[i] = worst
            if not ins_at: break
            new = []
            for i, it in enumerate(items):
                if i in ins_at:
                    n = ins_at[i]; total += n
                    if verbose: print("nop", n, "before", it[1].text)
                    new.append(("i", Ins(f"s_nop {n-1}")))
                new.append(it)
            self.items = new
        return total
    def text(self):
        out = []
        for k, v in self.items:
            out.append(v + ":" if k == "l" else v if k == "d" else "    " + v.text)
        return "\n".join(out) + "\n"

def stack_from_branch(j, i, items, seen):
    return True

import subprocess, tempfile, os
def sizes_of(prog, pre=""):
    txt = '.amdgcn_target "amdgcn-amd-amdhsa--gfx950"\n' + pre + '.text\n' + prog.text()
    d = tempfile.mkdtemp()
    open(d + "/a.s", "w").write(txt)
    r = subprocess.run(["clang", "-x", "assembler", "-target", "amdgcn-amd-amdhsa", "-mcpu=gfx950", "-c", d + "/a.s", "-o", d + "/a.o"], capture_output=True, text=True)
    assert r.returncode == 0, r.stderr[:2000]
    o = subprocess.run(["llvm-objdump", "-d", "-z", "--mcpu=gfx950", d + "/a.o"], capture_output=True, text=True).stdout
    sz = []
    for line in o.splitlines():
        m = re.search(r"// [0-9A-F]{12}: ((?:[0-9A-F]{8} ?)+)", line)
        if m: sz.append(4 * len(m.group(1).split()))
    idx = [i for i, it in enumerate(prog.items) if it[0] == "i"]
    assert len(idx) == len(sz), (len(idx), len(sz))
    return dict(zip(idx, sz))

NO_E64 = ("v_readfirstlane_b32", "v_permlane32_swap_b32", "v_permlane16_swap_b32", "v_dot2c_f32_bf16", "v_nop")
def align8(prog, pre="", allow_nop=True):
    sz = sizes_of(prog, pre)
    new = []; off = 0; cand = None; nprom = nnop = nleft = 0
    for i, it in enumerate(prog.items):
        if it[0] != "i":
            new.append(it); continue
        s = sz[i]; ins = it[1]
        if s == 8 and off % 8 == 4:
            if cand is not None:
                old = new[cand][1]
                t = old.text.split(None, 1)
                new[cand] = ("i", Ins(re.sub(r"_e32$", "", t[0]) + "_e64 " + t[1])); nprom += 1; off += 4
            elif allow_nop:
                new.append(("i", Ins("s_nop 0"))); nnop += 1; off += 4
            else:
                nleft += 1
        if s == 8: cand = None
        new.append(it)
        if s == 4 and ins.kind == "valu" and ins.op not in NO_E64 and not ins.dpp:
            cand = len(new) - 1
        off += s
    prog.items = new
    return nprom, nnop, nleft
```

```python
import sys, struct
from asmlib import Prog, align8

KNAME = "recurrent_scan__linear_kernel_hedgehog__dense_activation_silu__prompt_kernel"

WS_KVP = 0x00A00000
KVP_SZ = 4608
WS_FL = 0x00B80000
FL_O, FL_KV = 0x20000, 0x40000
WS_GR = 0x00B10000
WS_CS = 0x00B20000
WS_STAMP = 0x00C00000
WS_GX = 0x01000000
WS_BYTES = 0x01800000

K = 1024
SLOT = 48 * K
T_WOL, T_G, T_X = 112 * K, 32 * K, 48 * K
T_CNT = 158 * K
T_ZI = 156 * K
T_CS = 159 * K
T_KVS = 144 * K
T_PHI = 152 * K
T_GR = 154 * K
T_ST = T_CNT + 64
LDS_BYTES = 160 * K
KVR = 80
KVH = 17 * KVR

LOG2E = 1.4426950408889634
def f2u(x): return struct.unpack("<I", struct.pack("<f", x))[0]

S_X, S_W, S_W2, S_WO, S_WS, S_OUT = 8, 12, 16, 20, 24, 28
S_PHI, S_DBG = 32, 34
S_XOFF2, S_WOFF2, S_XOFF, S_WOFF, S_LX, S_LW, S_CSO, S_USTR, S_P8, S_IDX, S_KX, S_RB = range(36, 48)
S_F16 = 32
S_F = 12
S_KQ, S_CH = 52, 53
S_WAVE, S_R, S_CG, S_TYPE = 99, 100, 101, 61
S_T0, S_T1, S_T2, S_T3 = 48, 49, 50, 51
S_CS, S_RH, S_C = 54, 55, 56
S_RB2 = S_RB
S_BOFF, S_LB, S_BOFFO = 57, 58, 59
S_TAG = 60
S_KW = 62
S_AOFF, S_LA = 63, 64
S_SPIN = 65
S_MASK = 66
S_GR = 67
S_EX = 68
S_FL, S_PF = 70, 71
S_ST = 72
S_G, S_RR = 96, 97
S_BOFFM, S_BOFFOM = 96, 97
S_PP = 98
S_AF, S_AO, S_OD, S_OFL, S_OUTO = 3, 4, 5, 6, 7
S_GRP, S_PITCH, S_WCOL = 3, 4, 5
S_SW = 0
M_Z, M_PO, M_PEND, M_RDY, M_KK, M_C0, M_C1, M_QD, M_RT, M_KFL, M_OWN = 57, 58, 59, 0, 1, 12, 13, 14, 15, 6, 3

V_L31, V_H = 20, 21
V_GR = 34
V_GR1 = 28
V_P0, V_P1 = 38, 39
XA = 192
WA = 200
XB = [40, 48]
WBUF = [208, 224]
NM = [56, 60]
CSR = 64
ACC = 80
def slot(c): return ((c + 1) % 3) * SLOT

def srd(b): return f"s[{b}:{b+3}]"
def vr(b, n): return f"v[{b}:{b+n-1}]"
MF = "v_mfma_f32_32x32x16_bf16"

def w2rows(j):
    return ((j & 7) >> 1) * 224 + ((j >> 3) + 4 * (j & 1)) * 32 if j < 24 else (j - 24) * 224 + 96

class Gen:
    def __init__(self, stamps=None, x=()):
        self.P = Prog(); self.stamps = stamps
        self.nlab = 0; self.x = set(x); self.vm = []; self.lg = []; self.slow = []
    def opt(self, name, d):
        for a in self.x:
            if a.startswith(name + "="): return int(a.split("=")[1])
        return d
    def lab(self, p="L"):
        self.nlab += 1; return f"{p}_{self.nlab}"
    def stamp(self, name):
        name = str(name)
        if self.stamps and name in self.stamps:
            i = self.stamps.index(name)
            self.P(f"{'s_memrealtime' if 'rt' in self.x else 's_memtime'} s[{S_ST+2*i}:{S_ST+2*i+1}]")
    def stxt(self, name):
        if self.stamps and name in self.stamps:
            i = self.stamps.index(name)
            return f"{'s_memrealtime' if 'rt' in self.x else 's_memtime'} s[{S_ST+2*i}:{S_ST+2*i+1}]"
        return ""
    def sval(self, name, reg):
        if self.stamps and name in self.stamps:
            self.P(f"s_add_u32 s{S_ST+2*self.stamps.index(name)}, s{S_ST}, s{reg}")
    def vmop(self, tag, code):
        self.P(code); self.vm.append(tag)
    def vmwait(self, *tags, extra=""):
        last = max(i for i, t in enumerate(self.vm) if t in tags)
        n = min(63, len(self.vm) - 1 - last)
        self.P(f"s_waitcnt vmcnt({n}){extra}")
    def issue(self, L):
        for tag, code in L: self.vmop(tag, code)
    def lgop(self, tag, code):
        self.P(code); self.lg.append(tag)
    def lgwait(self, *tags):
        idx = [i for i, t in enumerate(self.lg) if t in tags]
        if not idx: return
        n = len(self.lg) - 1 - max(idx)
        self.P(f"s_waitcnt lgkmcnt({min(n,15)})")
        self.lg = self.lg[len(self.lg) - min(n, 15):] if n else []
    def lgall(self, extra=""):
        self.P("s_waitcnt lgkmcnt(0)" + extra); self.lg = []
    def retry(self, cond_code, reload_code, post="", wait="vmcnt(0) lgkmcnt(0)"):
        l = self.lab("SL"); e = self.lab("SE")
        self.P(f"{cond_code}\ns_cbranch_vccnz {l}\n{e}:")
        self.slow.append((l, e, cond_code, reload_code, post, wait))
    def scond(self, regs):
        L = [f"s_xor_b32 vcc_lo, s{regs[0]}, s{S_TAG}"]
        if len(regs) == 1: L.append("s_mov_b32 vcc_hi, 0")
        for r in regs[1:]: L += [f"s_xor_b32 vcc_hi, s{r}, s{S_TAG}", "s_or_b32 vcc_lo, vcc_lo, vcc_hi"]
        L.append("s_and_b64 vcc, vcc, vcc")
        return "\n".join(L)
    def sretry(self, regs, load):
        self.retry(self.scond(regs), load, wait="lgkmcnt(0)")
    def slow_paths(self):
        P = self.P
        for l, e, cond, reload_, post, wait in self.slow:
            l2 = self.lab("SLL"); l3 = self.lab("SLP")
            P(f"""
            {l}:
            s_mov_b32 s{S_SPIN}, 0
            {l2}:
            {reload_}
            s_add_u32 s{S_SPIN}, s{S_SPIN}, 1
            s_waitcnt {wait}
            {cond}
            s_cmp_gt_u32 s{S_SPIN}, SPIN_MAX
            s_cbranch_scc1 {l3}
            s_cbranch_vccnz {l2}
            {l3}:
            {post}
            s_branch {e}
            """)
    def flag(self, tagreg, soff, off=0, ex="0xff"):
        P = self.P
        P(f"s_mov_b64 exec, {ex}")
        self.vmop("flag", f"buffer_store_dword v{tagreg}, v{V_P0}, {srd(S_WS)}, s{soff} offen offset:{off} sc1")
        P("s_mov_b64 exec, -1")

    def prologue(self):
        P = self.P
        self.stamp(0)
        P(f"""
        s_load_dwordx4 s[{S_X}:{S_X+3}], s[0:1], 0
        s_load_dwordx4 s[{S_W2}:{S_W2+3}], s[0:1], 40
        v_lshrrev_b32 v2, 6, v0
        v_and_b32 v1, 63, v0
        v_lshlrev_b32 v6, 4, v1
        v_readfirstlane_b32 s{S_WAVE}, v2
        s_cmp_ge_u32 s2, 256
        s_cbranch_scc1 L_END
        s_lshr_b32 s{S_IDX}, s2, 3
        s_and_b32 s{S_R}, s{S_WAVE}, 3
        s_getpc_b64 s[{S_EX}:{S_EX+1}]
        s_lshl_b32 s{S_T2}, s{S_IDX}, 10
        s_lshl_b32 s{S_T3}, s{S_WAVE}, 15
        s_add_u32 s{S_T2}, s{S_T2}, s{S_T3}
        s_add_u32 s{S_EX}, s{S_EX}, s{S_T2}
        s_addc_u32 s{S_EX+1}, s{S_EX+1}, 0
        s_cmp_ge_u32 s{S_T2}, CODE_BYTES
        s_cbranch_scc1 L_NOPF2
        global_load_dwordx4 v[60:63], v6, s[{S_EX}:{S_EX+1}]
        L_NOPF2:
        s_load_dwordx4 s[{S_PHI}:{S_PHI+3}], s[0:1], 16
        s_load_dwordx4 s[{S_OUT}:{S_OUT+3}], s[0:1], 56
        s_load_dwordx2 s[{S_WS}:{S_WS+1}], s[0:1], 72
        s_bfe_u32 s{S_GRP}, s2, {0x10000 + self.opt("gb", 1):#x}
        s_and_b32 s{S_CS}, s{S_IDX}, 3
        s_and_b32 s{S_T2}, s2, 6
        s_lshl1_add_u32 s{S_RB}, s{S_T2}, s{S_CS}
        s_lshr_b32 s{S_TYPE}, s{S_IDX}, 4
        s_bfe_u32 s{S_T2}, s{S_IDX}, 0x20002
        s_and_b32 s{S_RH}, s2, 1
        s_lshl2_add_u32 s{S_CG}, s{S_RH}, s{S_T2}
        s_lshl_b32 s{S_T1}, s{S_GRP}, 9
        s_lshl_b32 s{S_T0}, s{S_TYPE}, 9
        s_sub_u32 s{S_PITCH}, 3584, s{S_T0}
        s_mul_i32 s{S_T2}, s{S_CG}, 7
        s_lshr_b32 s{S_T2}, s{S_T2}, 1
        s_movk_i32 s{S_USTR}, 128
        s_mov_b32 s{S_W+2}, 0x1c0000
        s_cmp_lg_u32 s{S_TYPE}, 0
        s_cselect_b32 s{S_T2}, s{S_CG}, s{S_T2}
        s_cselect_b32 s{S_USTR}, 1024, s{S_USTR}
        s_cselect_b32 s{S_W+2}, 0x180000, s{S_W+2}
        s_lshl_b32 s{S_WCOL}, s{S_T2}, 7
        s_mul_i32 s{S_T3}, s{S_GRP}, s{S_PITCH}
        s_lshl_b32 s{S_T3}, s{S_T3}, 8
        s_mov_b32 s{S_W+3}, 0x20000
        v_and_b32 v{V_L31}, 31, v1
        v_lshrrev_b32 v{V_H}, 5, v1
        s_lshl_b32 s{S_LX}, s{S_R}, 12
        s_cmp_lt_u32 s{S_WAVE}, 4
        s_cbranch_scc0 L_H0
        v_lshlrev_b32 v11, 4, v{V_L31}
        v_lshl_add_u32 v11, v{V_H}, 10, v11
        s_lshl3_add_u32 s{S_T0}, s{S_TYPE}, s{S_CG}
        s_lshl2_add_u32 s{S_T0}, s{S_T0}, s{S_R}
        s_lshl_b32 s{S_T0}, s{S_T0}, 11
        s_lshl_b32 s{S_T2}, s{S_RB}, 17
        s_add_u32 s{S_KX}, s{S_T0}, s{S_T2}
        """)
        self.stamp("pre")
        self.srd_xw()
        self.stamp("ka")
        P(f"""
        buffer_load_dwordx4 v[64:67], v11, {srd(S_X)}, s{S_KX} offen
        buffer_load_dwordx4 v[68:71], v11, {srd(S_X)}, s{S_KX} offen offset:512
        s_cbranch_scc1 L_MB
        s_branch L_MA
        L_H0:
        v_lshrrev_b32 v7, 3, v1
        v_and_b32 v8, 7, v1
        v_lshrrev_b32 v9, 4, v1
        v_xor_b32 v10, v8, v9
        v_lshlrev_b32 v10, 4, v10
        v_lshl_add_u32 v2, v7, 10, v10
        v_xor_b32 v3, 0x2040, v2
        v_and_b32 v9, 1, v9
        v_lshlrev_b32 v9, 2, v9
        v_xor_b32 v10, v8, v9
        v_lshlrev_b32 v10, 4, v10
        v_mad_u32_u24 v4, v7, s{S_PITCH}, v10
        s_lshl2_add_u32 s{S_XOFF}, s{S_RB}, s{S_R}
        s_lshl_b32 s{S_XOFF}, s{S_XOFF}, 15
        s_sub_u32 s{S_XOFF2}, s{S_XOFF}, s{S_T1}
        s_add_u32 s{S_XOFF}, s{S_XOFF}, s{S_T1}
        s_add_u32 s{S_KX}, s{S_XOFF}, 16384
        s_add_u32 m0, s{S_LX}, {slot(0)}
        s_lshl_b32 s{S_P8}, s{S_PITCH}, 3
        s_mul_i32 s{S_WOFF}, s{S_R}, s{S_P8}
        s_lshl1_add_u32 s{S_WOFF}, s{S_WOFF}, s{S_WCOL}
        s_sub_u32 s{S_WOFF2}, s{S_WOFF}, s{S_T3}
        s_add_u32 s{S_WOFF}, s{S_WOFF}, s{S_T3}
        s_lshl_b32 s{S_LW}, s{S_R}, 11
        s_add_u32 s{S_LW}, s{S_LW}, 0x4000
        s_mov_b32 s{S_KW}, s{S_WOFF}
        """)
        self.stamp("pre")
        self.srd_xw()
        self.stamp("ka")
        for i in range(4):
            if i: P(f"s_add_u32 m0, s{S_LX}, {slot(0) + i*1024}")
            P(f"buffer_load_dwordx4 v{2+(i&1)}, {srd(S_X)}, s{S_XOFF if i < 2 else S_KX} offen lds")
        for u in range(4):
            if u == 3: P(f"v_lshl_add_u32 v5, v7, 10, v10\ns_cmp_lg_u32 s{S_TYPE}, 0\ns_cbranch_scc1 L_HB")
            P(f"s_add_u32 m0, s{S_LW}, {slot(0) + u*8192}\ns_add_u32 s{S_KX}, s{S_KW}, s{S_P8}\nbuffer_load_dwordx4 v4, {srd(S_W)}, s{S_KW} offen lds")
            P(f"s_add_u32 m0, s{S_LW}, {slot(0) + u*8192 + 1024}\ns_add_u32 s{S_KW}, s{S_KW}, s{S_USTR}\nbuffer_load_dwordx4 v4, {srd(S_W)}, s{S_KX} offen lds")
    def srd_xw(self):
        self.P(f"""
        s_cmp_lg_u32 s{S_TYPE}, 0
        s_waitcnt lgkmcnt(0)
        s_cselect_b32 s{S_W}, s{S_X+2}, s{S_W2}
        s_cselect_b32 s{S_W+1}, s{S_X+3}, s{S_W2+1}
        s_mov_b32 s{S_X+2}, 0x200000
        s_mov_b32 s{S_X+3}, 0x20000
        """)
    def pf_bases(self):
        self.P(f"""
        s_lshl2_add_u32 s{S_T0}, s{S_CS}, s{S_R}
        s_mul_i32 s{S_T0}, s{S_T0}, s{S_PITCH}
        s_lshl2_add_u32 s{S_T0}, s{S_T0}, s{S_WCOL}
        s_add_u32 s{S_SW}, s{S_T0}, s{S_T3}
        """)
    def pf_w2(self, a0, a1):
        P = self.P
        if 'nor3' not in self.x and 'nor3w' not in self.x:
            P(f"s_lshl_b32 s{S_T0}, s{S_R}, 5\ns_add_u32 s{S_T0}, s{S_T0}, s{S_IDX}\ns_lshl_b32 s{S_T0}, s{S_T0}, 10\nv_lshlrev_b32 v{a0}, 17, v1\ns_mul_i32 s{S_T1}, s{S_RH}, {896*K}\ns_add_u32 s{S_T1}, s{S_T1}, s{S_T0}")
            self.vmop("r3", f"s_mov_b64 exec, 0x7f\nbuffer_load_dword v27, v{a0}, {srd(S_W2)}, s{S_T1} offen offset:384")
            self.vmop("r3", f"s_mov_b64 exec, 15\nbuffer_load_dword v27, v{a0}, {srd(S_WO)}, s{S_T0} offen offset:384\ns_mov_b64 exec, -1")
        if 'nopf' not in self.x and 'nogs' not in self.x:
            P(f"s_lshl2_add_u32 s{S_T0}, s2, s{S_R}\ns_lshl_b32 s{S_T1}, s{S_T0}, 9\ns_mul_i32 s{S_T0}, s{S_T0}, 1792\nv_lshlrev_b32 v{a1}, 7, v1")
            self.vmop("r3", f"s_mov_b64 exec, 0x3fff\nbuffer_load_dword v27, v{a1}, {srd(S_W2)}, s{S_T0} offen")
            self.vmop("r3", f"s_mov_b64 exec, 15\nbuffer_load_dword v27, v{a1}, {srd(S_WO)}, s{S_T0+1} offen\ns_mov_b64 exec, -1")
    def pf_xcd(self, c, a):
        P = self.P
        def go(srdb, base, n, parts, k, sc=""):
            lo, hi = n * k // parts, n * (k + 1) // parts
            m = ((1 << hi) - 1) ^ ((1 << lo) - 1)
            P(f"s_lshl2_add_u32 s{S_T0}, s{S_IDX}, s{S_R}\n{base}\nv_lshlrev_b32 v{a}, 7, v1\ns_mov_b32 exec_lo, {m & 0xffffffff:#x}\ns_mov_b32 exec_hi, {m >> 32:#x}")
            self.vmop("r3", f"buffer_load_dword v27, v{a}, {srd(srdb)}, s{S_T0} offen {sc}")
            P("s_mov_b64 exec, -1")
        for nm, nn, srdb, n, base, sc in (
            ("pw", "nw2", S_W2, 56, f"s_mul_i32 s{S_T0}, s{S_T0}, 7168\ns_mul_i32 s{S_T1}, s{S_RH}, {896*K}\ns_add_u32 s{S_T0}, s{S_T0}, s{S_T1}", ""),
            ("po", "no2", S_WO, 32, f"s_lshl_b32 s{S_T0}, s{S_T0}, 12", ""),
            ("ph", "nh2", S_WS, 56, f"s_and_b32 s{S_T1}, s{S_T0}, 7\ns_lshl3_add_u32 s{S_T1}, s{S_RH}, s{S_T1}\ns_mul_i32 s{S_T1}, s{S_T1}, 7\ns_lshr_b32 s{S_T0}, s{S_T0}, 3\ns_and_b32 s{S_T2}, s2, 6\ns_lshl3_add_u32 s{S_T0}, s{S_T2}, s{S_T0}\ns_mul_i32 s{S_T0}, s{S_T0}, 144\ns_add_u32 s{S_T0}, s{S_T0}, s{S_T1}\ns_lshl_b32 s{S_T0}, s{S_T0}, 10", "sc1")):
            p0 = self.opt(nm, 99); parts = self.opt(nn, 1)
            if p0 <= c < p0 + parts: go(srdb, base, n, parts, c - p0, sc)
    def late_consts(self):
        P = self.P
        P(f"""
        s_mov_b32 s{S_WO}, s{S_PHI+2}
        s_mov_b32 s{S_WO+1}, s{S_PHI+3}
        s_mov_b32 s{S_DBG}, s{S_OUT+2}
        s_mov_b32 s{S_DBG+1}, s{S_OUT+3}
        s_mov_b32 s{S_MASK}, 0xffff0000
        s_lshr_b32 s{S_C}, s{S_IDX}, 2
        s_bfe_u32 s{S_T0}, s2, {0x10000 + 3 - self.opt("gb", 1):#x}
        s_lshl2_add_u32 s{S_CS}, s{S_T0}, s{S_CS}
        s_mov_b32 s{S_OUT+2}, 0x200000
        s_mov_b32 s{S_OUT+3}, 0x20000
        s_mov_b32 s{S_WO+2}, 0x80000
        s_mov_b32 s{S_WO+3}, 0x20000
        s_mov_b32 s{S_W2}, s{S_W2+2}
        s_mov_b32 s{S_W2+1}, s{S_W2+3}
        s_mov_b32 s{S_W2+2}, 0x1c0000
        s_mov_b32 s{S_W2+3}, 0x20000
        s_add_u32 s{S_WS}, s{S_WS}, {self.opt("wsoff", 0) << 20:#x}
        s_addc_u32 s{S_WS+1}, s{S_WS+1}, 0
        s_mov_b32 s{S_WS+2}, {WS_BYTES}
        s_mov_b32 s{S_WS+3}, 0x20000
        s_and_b32 s{S_CH}, s{S_R}, 1
        s_lshr_b32 s{S_KQ}, s{S_R}, 1
        v_bfe_u32 v22, v1, 2, 2
        v_lshl_add_u32 v22, v{V_H}, 3, v22
        v_bfe_u32 v23, v1, 4, 1
        v_lshlrev_b32 v23, 5, v23
        v_and_b32 v24, 1, v1
        v_lshl_add_u32 v23, v24, 4, v23
        v_bfe_u32 v24, v1, 1, 1
        v_lshl_add_u32 v23, v24, 3, v23
        v_bfe_u32 v24, v1, 3, 1
        v_lshl_add_u32 v23, v24, 6, v23
        v_lshl_add_u32 v7, v22, 7, v23
        """)
    def tile_addr(self, dst, tau_sgpr, extra):
        P = self.P
        P(f"""
        s_and_b32 s{S_T0}, s{tau_sgpr}, 1
        s_lshl_b32 s{S_T0}, s{S_T0}, 6
        v_xor_b32 v{dst}, s{S_T0}, v7
        s_lshr_b32 s{S_T0}, s{tau_sgpr}, 1
        s_lshl_b32 s{S_T0}, s{S_T0}, 13
        s_add_u32 s{S_T0}, s{S_T0}, {extra}
        v_add_u32 v{dst}, s{S_T0}, v{dst}
        """)
    def lsync(self, cnt_off, target):
        P = self.P
        l = self.lab("LS"); e = self.lab("LSE")
        P(f"""
        v_mov_b32 v{V_P0}, {T_CNT + cnt_off}
        v_mov_b32 v{V_P1}, 1
        s_mov_b64 exec, 1
        ds_add_u32 v{V_P0}, v{V_P1}
        s_mov_b32 s{S_SPIN}, 0
        {l}:
        ds_read_b32 v{V_P1}, v{V_P0}
        s_add_u32 s{S_SPIN}, s{S_SPIN}, 1
        s_waitcnt lgkmcnt(0)
        v_readfirstlane_b32 s{S_T0}, v{V_P1}
        s_cmp_gt_u32 s{S_SPIN}, SPIN_MAX
        s_cbranch_scc1 {e}
        s_cmp_lt_u32 s{S_T0}, {target}
        s_cbranch_scc1 {l}
        {e}:
        s_mov_b64 exec, -1
        """)
    def row_stats(self):
        P = self.P
        U = 80
        for k in range(8):
            P(f"v_lshlrev_b32 v{U+2*k}, 16, v{64+k}\nv_and_b32 v{U+2*k+1}, s{S_MASK}, v{64+k}")
        def allred(r, t):
            for m in ("quad_perm:[1,0,3,2]", "quad_perm:[2,3,0,1]", "row_half_mirror", "row_mirror"):
                P(f"v_add_f32_dpp v{r}, v{r}, v{r} {m} row_mask:0xf bank_mask:0xf")
            P(f"v_mov_b32 v{t}, v{r}\nv_permlane16_swap_b32 v{r}, v{t}\nv_add_f32 v{r}, v{r}, v{t}")
        self.sum16(U, 64, 34)
        allred(34, 64)
        P(f"v_mul_f32 v34, {f2u(1/512):#x}, v34")
        for k in range(8):
            P(f"v_pk_add_f32 v[{U+2*k}:{U+2*k+1}], v[{U+2*k}:{U+2*k+1}], v[34:35] op_sel_hi:[1,0] neg_lo:[0,1] neg_hi:[0,1]")
        P(f"v_pk_mul_f32 v[64:65], v[{U}:{U+1}], v[{U}:{U+1}]\nv_pk_mul_f32 v[66:67], v[{U+2}:{U+3}], v[{U+2}:{U+3}]")
        for k in range(2, 8):
            d = 64 + 2*(k & 1)
            P(f"v_pk_fma_f32 v[{d}:{d+1}], v[{U+2*k}:{U+2*k+1}], v[{U+2*k}:{U+2*k+1}], v[{d}:{d+1}]")
        P(f"v_pk_add_f32 v[64:65], v[64:65], v[66:67]\nv_add_f32 v36, v64, v65")
        allred(36, 64)
        P(f"v_mov_b32 v64, {f2u(1e-5):#x}\nv_fmac_f32 v64, {f2u(1/512):#x}, v36\nv_rsq_f32 v35, v64\nv_sqrt_f32 v36, v64")
    def tag_ld(self): return f"s_load_dword s{S_TAG}, s[{S_DBG}:{S_DBG+1}], 0"
    def tag_check(self):
        self.retry(f"s_cmp_eq_u32 s{S_TAG}, 0\ns_cselect_b64 vcc, -1, 0",
                   f"v_mov_b32 v{V_P0}, 0\nglobal_load_dword v{V_P0}, v{V_P0}, s[{S_DBG}:{S_DBG+1}] sc1\ns_waitcnt vmcnt(0)\nv_readfirstlane_b32 s{S_TAG}, v{V_P0}")
    def sum16l(self, b, m, dst=None):
        return [f"v_pk_add_f32 {vr(m,2)}, {vr(b,2)}, {vr(b+2,2)}",
                f"v_pk_add_f32 {vr(m+2,2)}, {vr(b+4,2)}, {vr(b+6,2)}",
                f"v_pk_add_f32 {vr(m,2)}, {vr(m,2)}, {vr(b+8,2)}",
                f"v_pk_add_f32 {vr(m+2,2)}, {vr(m+2,2)}, {vr(b+10,2)}",
                f"v_pk_add_f32 {vr(m,2)}, {vr(m,2)}, {vr(b+12,2)}",
                f"v_pk_add_f32 {vr(m+2,2)}, {vr(m+2,2)}, {vr(b+14,2)}",
                f"v_pk_add_f32 {vr(m,2)}, {vr(m,2)}, {vr(m+2,2)}",
                f"v_add_f32 v{m if dst is None else dst}, v{m}, v{m+1}"]
    def sum16(self, b, m, dst=None):
        for t in self.sum16l(b, m, dst): self.P(t)

    def m_phase1(self, isB, consts, hooks):
        P = self.P
        if isB:
            frags = [(0, 0), (0, 8192), (0, 16384)]
            units = [(f, rho, f == 2) for f in range(3) for rho in range(2)]
            nb = 1
        else:
            frags = [(0, 0), (1, 0), (0, 8192), (2, 0)]
            units = [(f, rho, False) for f in range(3) for rho in range(2)] + [(3, 0, False)]
            nb = 3
        nf = len(frags); nu = len(units)
        self.vm.append("xrow")
        self.stamp("i0")
        if not isB:
            P(f"""
            s_or_b32 s{S_T0}, s2, s{S_WAVE}
            s_cmp_lg_u32 s{S_T0}, 0
            s_cbranch_scc1 L_NOLEAD
            s_memrealtime s[{S_EX}:{S_EX+1}]
            v_mov_b32 v12, 0
            s_waitcnt lgkmcnt(0)
            s_or_b32 s{S_T0}, s{S_EX}, 1
            v_mov_b32 v13, s{S_T0}
            s_mov_b64 exec, 1
            global_store_dword v12, v13, s[{S_OUT+2}:{S_OUT+3}] sc1
            s_mov_b64 exec, -1
            L_NOLEAD:
            """)
        if isB and 'nor3' not in self.x:
            P(f"""
            s_and_b32 s{S_T0}, s{S_IDX}, 15
            s_lshl4_add_u32 s{S_T0}, s{S_R}, s{S_T0}
            s_lshl_b32 s{S_T0}, s{S_T0}, 10
            v_lshlrev_b32 v26, 16, v1
            s_cmp_eq_u32 s{S_RH}, 0
            s_cselect_b64 exec, 0xffffff, 0
            """)
            self.vmop("r3", f"buffer_load_dword v27, v26, {srd(S_W)}, s{S_T0} offen offset:384")
            P("s_mov_b64 exec, -1")
        self.late_consts()
        P(f"""
        s_mov_b32 s{S_RR}, s{S_KQ}
        s_mov_b32 s{S_G}, s{S_CH}
        v_bfe_u32 v23, v1, 1, 3
        v_xor_b32 v23, v23, v{V_H}
        v_lshlrev_b32 v23, 4, v23
        v_lshl_add_u32 v23, v{V_L31}, 7, v23
        s_add_u32 s{S_T0}, s{S_LX}, {slot(0)}
        v_add_u32 v{XA}, s{S_T0}, v23
        v_xor_b32 v{XA+1}, 32, v{XA}
        v_xor_b32 v{XA+2}, 64, v{XA}
        v_xor_b32 v{XA+3}, 0x60, v{XA}
        s_lshl1_add_u32 s{S_T0}, s{S_RB}, s{S_RR}
        s_lshr_b32 s{S_T1}, s{S_CG}, 2
        s_lshl1_add_u32 s{S_T0}, s{S_T0}, s{S_T1}
        s_lshl_b32 s{S_T0}, s{S_T0}, 10
        s_and_b32 s{S_T1}, s{S_CG}, 3
        s_lshl1_add_u32 s{S_T1}, s{S_T1}, s{S_G}
        s_lshl2_add_u32 s{S_T0}, s{S_T1}, s{S_T0}
        s_add_u32 s{S_FL}, s{S_T0}, {WS_FL + (FL_O if isB else 0)}
        """)
        for k in range(4): P(f"v_xor_b32 v{XA+4+k}, 0x1000, v{XA+k}")
        wb = 0x4000 + slot(0)
        if isB:
            self.tile_addr(WA, S_G, wb)
            P(f"""
            s_lshl_b32 s{S_T0}, s{S_RR}, 5
            v_xor_b32 v{WA}, s{S_T0}, v{WA}
            s_lshl_b32 s{S_T1}, s{S_G}, 7
            s_add_u32 s{S_T1}, s{S_T1}, {T_CS}
            s_lshl_b32 s{S_T0}, s{S_RR}, 6
            v_lshlrev_b32 v14, 2, v{V_L31}
            v_xor_b32 v14, s{S_T0}, v14
            v_add_u32 v14, s{S_T1}, v14
            """)
            cso = [(14, 64*f) for f in range(3)]
        else:
            P(f"s_and_b32 s{S_T3}, s{S_CG}, 1\ns_lshl_b32 s{S_T1}, s{S_G}, 2\ns_add_u32 s{S_T1}, s{S_T1}, s{S_T3}")
            P(f"s_lshl_b32 s{S_T2}, s{S_T1}, 7\ns_add_u32 s{S_T2}, s{S_T2}, {T_CS}\nv_lshlrev_b32 v13, 2, v{V_L31}\nv_add_u32 v14, s{S_T2}, v13")
            self.tile_addr(WA, S_T1, wb)
            P(f"s_add_u32 s{S_T1}, s{S_T1}, 1")
            self.tile_addr(WA + 1, S_T1, wb)
            P(f"s_add_u32 s{S_T1}, s{S_T3}, 3")
            self.tile_addr(WA + 2, S_T1, wb)
            P(f"s_lshl_b32 s{S_T2}, s{S_T1}, 7\ns_add_u32 s{S_T2}, s{S_T2}, {T_CS}\nv_add_u32 v13, s{S_T2}, v13")
            cso = [(14, 0), (14, 32), (14, 64), (13, 0)]
        consts()
        self.stamp("i1")
        self.vmwait("xrow")
        self.stamp("xr")
        self.row_stats()
        P(f"s_lshl_b32 s{S_T0}, s{S_R}, 5\ns_add_u32 s{S_T0}, s{S_T0}, {T_ST}\nv_lshlrev_b32 v{V_P1}, 4, v{V_H}\nv_add_u32 v{V_P1}, s{S_T0}, v{V_P1}")
        if isB: self.vmwait("clr")
        P(f"ds_write_b96 v{V_P1}, {vr(V_GR,3)}")
        if self.opt("r3c", 2) == 0: self.pf_w2(24, 25)
        self.lgall()
        self.stamp("i2")
        P("s_setprio 2")
        P("s_barrier")
        self.stamp(1)
        def reads(t):
            b = t & 1
            X = [(f"x{rho}", f"ds_read_b128 {vr(XB[b]+4*rho,4)}, v{XA+4*rho+t}") for rho in range(2)]
            W = []
            for f, (bi, off) in enumerate(frags):
                o = off + t * 2048; ar = WA + bi; d = WBUF[b] + 4*f
                W.append([(f"w{f}", f"ds_read_b64_tr_b16 {vr(d,2)}, v{ar} offset:{o}"), (f"w{f}", f"ds_read_b64_tr_b16 {vr(d+2,2)}, v{ar} offset:{o+512}")])
            L = [X[0]] + W[0] + [X[1]]
            for w in W[1:]: L += w
            return [(f"{tg}_{b}", c) for tg, c in L]
        def spread(L, lo, hi, slots):
            n = hi - lo; p = 0
            for i in range(n):
                q = (len(L) - p + (n - i) - 1) // (n - i)
                slots[lo + i] += L[p:p+q]; p += q
        for tg, c in reads(0): self.lgop(tg, c)
        for c in range(8):
            for t in range(4):
                b = t & 1
                rs = [[] for _ in range(nu)]; vs = [[] for _ in range(nu)]
                last = (c == 7 and t == 3)
                if t < 3: spread(reads(t + 1), 0, nu - 2, rs)
                elif not last: spread(reads(0), 1, nu - 1, rs)
                else: rs[1] = [("cs", f"ds_read2_b32 {vr(CSR+2*f,2)}, v{a} offset0:{o} offset1:{o}") for f, (a, o) in enumerate(cso)]
                if c < 7:
                    d = (slot(c + 1) - slot(c)) & 0xffffffff
                    upd = lambda regs: [f"v_add_u32 v{r_}, {d:#x}, v{r_}" for r_ in regs]
                    if t == 1: spread(upd([XA, XA+4, XA+1, XA+5]), 1, nu, vs)
                    if t == 2: spread(upd([XA+2, XA+6]), 1, 3, vs); vs[nu-1] += upd([WA+k for k in range(nb)])
                    if t == 3: spread(upd([XA+3, XA+7]), 2, nu, vs)
                for i, (f, rho, sw) in enumerate(units):
                    if i == 0: self.lgwait(f"x0_{b}", f"x1_{b}", f"w0_{b}", f"w1_{b}")
                    if i == 4: self.lgwait(f"w2_{b}", f"w3_{b}")
                    x = vr(XB[b] + 4*rho, 4); w = vr(WBUF[b] + 4*f, 4); acc = vr(ACC + 16*i, 16)
                    aa, bb = (x, w) if sw else (w, x)
                    P(f"{MF} {acc}, {aa}, {bb}, {'0' if (c == 0 and t == 0) else acc}")
                    if t == 3 and i == 1:
                        self.stamp(f"a{c}")
                        self.lgall(); P("s_barrier")
                        self.stamp(f"b{c}")
                    for tg, code in rs[i]: self.lgop(tg, code)
                    for code in hooks.get((c, t, i), []): code()
                    for v in vs[i]: P(v)
                if t == 3: self.stamp(f"c{c}")
        self.lgall()
        def corr(i):
            f, rho, sw = units[i]
            acc = vr(ACC + 16*i, 16); x = vr(NM[rho], 4); w = vr(CSR + 2*f, 4)
            aa, bb = (x, w) if sw else (w, x)
            return f"{MF} {acc}, {aa}, {bb}, {acc}"
        self.stamp(2)
        return corr

    def m_hooks(self, nf):
        P = self.P
        h = {}
        h[(2, 3, 2)] = [lambda: P(self.tag_ld())]
        h[(4, 0, 4)] = [self.tag_check]
        def graddr():
            P(f"s_waitcnt vmcnt(0)\ns_lshl_b32 s{S_T0}, s{S_RB}, 11\ns_lshl_b32 s{S_T1}, s{S_R}, 9\ns_add_u32 s{S_GR}, s{S_T0}, s{S_T1}\ns_add_u32 s{S_GR}, s{S_GR}, {WS_GR}\ns_xor_b32 s{S_OD}, s{S_GR}, 512")
            P(f"v_lshlrev_b32 v{V_P0}, 4, v{V_L31}\ns_add_u32 s{S_T1}, s{S_T1}, {T_GR}\nv_add_u32 v26, s{S_T1}, v{V_P0}\nv_xor_b32 v27, 0x200, v26")
        h[(5, 0, 4)] = [graddr]
        h[(6, 3, 5)] = [lambda: (self.lgop("gr", f"ds_read_b128 {vr(V_GR,4)}, v26"), self.lgop("gr", f"ds_read_b128 {vr(V_GR1,4)}, v27"))]
        ld = [f"buffer_load_dwordx4 {vr(V_GR,4)}, v{V_P0}, {srd(S_WS)}, s{S_GR} offen sc1",
              f"buffer_load_dwordx4 {vr(V_GR1,4)}, v{V_P0}, {srd(S_WS)}, s{S_OD} offen sc1"]
        def grcheck():
            self.stamp("g0"); self.lgwait("gr"); self.stamp("g1")
            self.retry(f"v_cmp_ne_u32 vcc, s{S_TAG}, v{V_GR+3}\nv_cmp_ne_u32 s[{S_EX}:{S_EX+1}], s{S_TAG}, v{V_GR1+3}\ns_or_b64 vcc, vcc, s[{S_EX}:{S_EX+1}]", "\n".join(ld),
                       post=f"ds_write_b128 v26, {vr(V_GR,4)}\nds_write_b128 v27, {vr(V_GR1,4)}\ns_waitcnt lgkmcnt(0)")
        h[(7, 0, 5)] = [grcheck, lambda: self.stamp("g2")]
        h[(7, 2, 0)] = [lambda: self.stamp("g3")]
        for rho, g in ((0, V_GR), (1, V_GR1)):
            n = NM[rho]
            h[(7, 1, 2*rho)] = [lambda n=n, g=g: P(f"v_cvt_pk_bf16_f32 v{n}, -v{g}, -v{g}\nv_mov_b32 v{n+2}, 0\nv_lshlrev_b32 v{V_P1}, 16, v{n}")]
            h[(7, 1, 2*rho+1)] = [lambda n=n, g=g: P(f"v_sub_f32 v{V_P1}, -v{g}, v{V_P1}\nv_mov_b32 v{n+3}, 0\nv_cvt_pk_bf16_f32 v{n+1}, v{V_P1}, v{V_P1}")]
        h[(7, 1, 4)] = [lambda: P(f"v_mov_b32 v{CSR+2*nf}, 0\nv_mov_b32 v{CSR+2*nf+1}, 0\nv_lshlrev_b32 v{V_P0}, 7, v1")]
        return h

    def dma_p1(self, c, isB):
        pitch = 3072 if isB else 3584
        offs = [0, 1024, 2048] if isB else [0, 128, 256, 384]
        xo, wo = (S_XOFF, S_WOFF) if c < 4 else (S_XOFF2, S_WOFF2)
        L = []
        for i in range(4):
            pre = f"s_add_u32 s{S_KX}, s{xo}, {c*128 + (i>>1)*16384}\n" if i % 2 == 0 else ""
            L.append((f"c{c}", f"s_add_u32 m0, s{S_LX}, {slot(c) + i*1024}\n" + pre + f"buffer_load_dwordx4 v{2+(i&1)}, {srd(S_X)}, s{S_KX} offen lds"))
        for u, uo in enumerate(offs):
            for e in range(2):
                L.append((f"c{c}", f"s_add_u32 m0, s{S_LW}, {slot(c) + u*8192 + e*1024}\ns_add_u32 s{S_KW}, s{wo}, {(c*64 + 8*e)*pitch + uo}\nbuffer_load_dwordx4 v4, {srd(S_W)}, s{S_KW} offen lds"))
        return L
    def dma_w2(self, js):
        return [(f"h{j//12+1}", f"s_add_u32 m0, s{S_LB}, {j*4096}\ns_add_u32 s{S_KW}, s{S_BOFF}, {w2rows(j)*K}\nbuffer_load_dwordx4 v5, {srd(S_W2)}, s{S_KW} offen lds") for j in js]
    def dma_wo(self, js):
        return [("wo", f"s_add_u32 m0, s{S_LB}, {T_WOL + j*4096 if j < 8 else (j-8)*4096}\ns_add_u32 s{S_KW}, s{S_BOFFO}, {j*32*K}\nbuffer_load_dwordx4 v5, {srd(S_WO)}, s{S_KW} offen lds") for j in js]
    def trd(self, d, a, o):
        return [f"ds_read_b64_tr_b16 {vr(d,2)}, v{a} offset:{o}", f"ds_read_b64_tr_b16 {vr(d+2,2)}, v{a} offset:{o+512}"]
    def b_read(self, steps, a):
        P = self.P
        for n, s in enumerate(steps):
            if n >= 3: P("s_waitcnt lgkmcnt(8)")
            for ct in range(2): self.emit(self.trd(128 + 8*s + 4*ct, a + ct, s * 2048))
    def cnt_add(self, off, va, vt):
        self.P(f"v_mov_b32 v{vt}, 1\ns_mov_b64 exec, 1")
        self.lgop("cnt", f"ds_add_u32 v{va}, v{vt} offset:{off}")
        self.P("s_mov_b64 exec, -1")
    def cnt_check(self, off, va, vd, n=4):
        self.retry(f"v_cmp_gt_u32 vcc, {n}, v{vd}", f"ds_read_b32 v{vd}, v{va} offset:{off}", wait="lgkmcnt(0)")

    def tissue(self, L, name="cap"):
        cap = self.opt(name, {"cap": 16, "cap1": 0}[name])
        for k, it in enumerate(L):
            if cap: self.P(f"s_waitcnt vmcnt({cap - 1})")
            self.vmop(*it)
    def h_phase1(self, isB):
        P = self.P
        WF = 48; CS = 80; CG = 84
        self.vm.append("c0")
        self.stamp("i0")
        self.pf_bases()
        if 'nopf' not in self.x:
            pm = (0x777777777777 if isB else 0xffffffffffff) & ((1 << (16 * self.opt("npf", 3))) - 1)
            P(f"""
            v_lshrrev_b32 v22, 4, v1
            v_bfe_u32 v23, v1, 2, 2
            v_lshl_add_u32 v22, v22, 6, v23
            v_add_u32 v22, 64, v22
            v_and_b32 v23, 3, v1
            v_lshlrev_b32 v23, {10 if isB else 7}, v23
            v_mad_u32_u24 v26, v22, s{S_PITCH}, v23
            s_mov_b32 exec_lo, {pm & 0xffffffff:#x}
            s_mov_b32 exec_hi, {pm >> 32:#x}
            """)
            self.vmop("pf", f"buffer_load_dword v27, v26, {srd(S_W)}, s{S_SW} offen")
            P("s_mov_b64 exec, -1")

        self.late_consts()
        P(f"""
        s_cmp_eq_u32 s{S_CS}, 0
        s_cselect_b32 s{S_T0}, {slot(0)}, {slot(2)}
        s_lshl_b32 s{S_T1}, s{S_R}, 13
        s_add_u32 s{S_T0}, s{S_T0}, s{S_T1}
        s_add_u32 s{S_T0}, s{S_T0}, 0x4000
        v_add_u32 v12, s{S_T0}, v7
        v_xor_b32 v13, 64, v12
        s_lshl3_add_u32 s{S_CSO}, s{S_TYPE}, s{S_CG}
        s_lshl2_add_u32 s{S_CSO}, s{S_CSO}, s{S_R}
        s_lshl_b32 s{S_CSO}, s{S_CSO}, 12
        s_add_u32 s{S_CSO}, s{S_CSO}, {WS_CS}
        s_lshl1_add_u32 s{S_PP}, s{S_GRP}, s{S_CS}
        s_lshl_b32 s{S_PP}, s{S_PP}, 9
        s_add_u32 s{S_PP}, s{S_PP}, s{S_CSO}
        v_lshlrev_b32 v14, 3, v1
        s_lshl_b32 s{S_T0}, s{S_R}, 8
        s_add_u32 s{S_T0}, s{S_T0}, {T_CS}
        v_lshlrev_b32 v15, 2, v1
        v_add_u32 v15, s{S_T0}, v15
        s_lshl_b32 s{S_T2}, s{S_R}, 13
        s_lshl_b32 s{S_T0}, s{S_C}, 7
        s_add_u32 s{S_BOFFO}, s{S_T2}, s{S_T0}
        s_mul_i32 s{S_T0}, s{S_RH}, {896*K}
        s_add_u32 s{S_BOFF}, s{S_BOFFO}, s{S_T0}
        s_lshl_b32 s{S_LB}, s{S_R}, 10
        v_mov_b32 v{CS}, 0
        v_mov_b32 v{CS+1}, 0
        v_mov_b32 v{CS+2}, 0
        v_mov_b32 v{CS+3}, 0
        v_mov_b32 v22, {T_CNT}
        ds_write_b128 v22, {vr(CS,4)}
        ds_write_b128 v22, {vr(CS,4)} offset:16
        ds_write_b128 v22, {vr(CS,4)} offset:32
        s_lshl_b32 s{S_T0}, s{S_R}, 9
        s_add_u32 s{S_T0}, s{S_T0}, {T_ZI}
        v_add_u32 v22, s{S_T0}, v14
        ds_write_b64 v22, {vr(CS,2)}
        s_mov_b32 s{S_FL}, 0x3f003f00
        """)
        hold = self.opt("hold", 4)
        items = [self.dma_p1(c, isB) for c in range(1, 8)] + [self.dma_w2(range(0, 12)), self.dma_w2(range(12, 24))]
        n0 = self.opt("n0", 4)
        self.issue(items[0][:n0])
        self.stamp("i1")
        self.vmwait("c0", extra=" lgkmcnt(0)"); self.stamp("i2"); P("s_barrier")
        self.stamp(1)
        P(f"s_setprio {self.opt('hp', 0)}")
        def csum(p):
            l = self.lab("NOCS")
            P(f"s_cmp_lg_u32 s{S_CS}, {p >> 1}\ns_cbranch_scc1 {l}\ns_waitcnt lgkmcnt(0)")
            for hf in range(2):
                for t in range(2):
                    for i in range(2):
                        d = WF + 16*hf + 8*t + 4*i; o = (2*hf + t) * 2048 + (p & 1) * SLOT
                        if (hf, t, i) == (1, 1, 1): P("s_waitcnt lgkmcnt(12)")
                        P(f"ds_read_b64_tr_b16 {vr(d,2)}, v{12+i} offset:{o}\nds_read_b64_tr_b16 {vr(d+2,2)}, v{12+i} offset:{o+512}")
            for hf in range(2):
                P(f"s_waitcnt lgkmcnt({8 - 8*hf})")
                for t in range(2):
                    for k in range(4):
                        for i in range(2):
                            P(f"v_dot2c_f32_bf16 v{CS+i}, s{S_FL}, v{WF + 16*hf + 8*t + 4*i + k}")
            P(f"{l}:")
        P(self.tag_ld())
        self.tissue(items[0][n0:], "cap1")
        if isB:
            P(f"""
            s_and_b32 s{S_T2}, s{S_R}, 1
            s_lshl_b32 s{S_T0}, s{S_CG}, 11
            s_lshl_b32 s{S_T1}, s{S_T2}, 10
            s_add_u32 s{S_T0}, s{S_T0}, s{S_T1}
            s_add_u32 s{S_EX}, s{S_PHI}, s{S_T0}
            s_addc_u32 s{S_EX+1}, s{S_PHI+1}, 0
            s_add_u32 m0, s{S_T1}, {T_PHI}
            """)
            self.vmop("phi", f"global_load_lds_dwordx4 v6, s[{S_EX}:{S_EX+1}]")
        cut = lambda L: min(len(L), self.opt("fwd", 8))
        self.tissue(items[1][:cut(items[1])], "cap1")
        csum(0)
        gl = [f"buffer_load_dwordx2 {vr(CG+2*j,2)}, v14, {srd(S_WS)}, s{S_CSO} offen offset:{j*512} sc1" for j in range(4)]
        gc = "\n".join([f"v_xor_b32 v{V_P1}, s{S_TAG}, v{CG+1}"] + [f"v_xor_b32 v{V_P0}, s{S_TAG}, v{CG+2*j+1}\nv_or_b32 v{V_P1}, v{V_P1}, v{V_P0}" for j in range(1, 4)])
        gc += f"\nv_cmp_ne_u32 vcc, 0, v{V_P1}"
        for c in range(7):
            self.stamp(f"w{c}")
            self.vmwait(f"c{c+1}", *(["grd", "cg"] if c == 6 else []))
            self.stamp(f"a{c}")
            P("s_barrier")
            self.stamp(f"b{c}")
            if c == 0:
                P(f"""
                s_lshl_b32 s{S_T0}, s{S_R}, 5
                s_add_u32 s{S_T1}, s{S_T0}, {T_ST}
                v_and_b32 v22, 16, v6
                v_add_u32 v23, s{S_T1}, v22
                ds_read_b96 {vr(V_GR,3)}, v23
                s_lshl3_add_u32 s{S_T1}, s{S_TYPE}, s{S_CG}
                s_lshl4_add_u32 s{S_T1}, s{S_RB}, s{S_T1}
                s_lshl_b32 s{S_T1}, s{S_T1}, 7
                s_add_u32 s{S_T0}, s{S_T0}, s{S_T1}
                s_add_u32 s{S_GR}, s{S_T0}, {WS_GR}
                """)
            if c == self.opt("r3c", 2) - 1: self.pf_w2(24, 25)
            self.pf_xcd(c + 1, 24)
            if c == 5:
                P(f"s_lshl2_add_u32 s{S_T0}, s{S_RB}, s{S_R}\ns_lshl_b32 s{S_T0}, s{S_T0}, 9\ns_add_u32 s{S_T0}, s{S_T0}, {WS_GR}\ns_lshl_b32 s{S_T1}, s{S_R}, 9\ns_add_u32 m0, s{S_T1}, {T_GR}\ns_mov_b32 exec_hi, 0")
                self.vmop("grd", f"buffer_load_dwordx4 v6, {srd(S_WS)}, s{S_T0} offen sc1 lds")
                P("s_mov_b32 exec_hi, -1")
                for l in gl: self.vmop("cg", l)
            if c == self.opt("pf2", 0) - 1:
                P(f"s_sub_u32 s{S_T0}, s{S_WOFF2}, s{S_WOFF}\ns_add_u32 s{S_T0}, s{S_T0}, s{S_SW}\ns_add_u32 s{S_T0}, s{S_T0}, {192*(3072 if isB else 3584)}\ns_mov_b32 exec_lo, {0x77777777 if isB else -1:#x}\ns_mov_b32 exec_hi, 0")
                self.vmop("pf", f"buffer_load_dword v27, v26, {srd(S_W)}, s{S_T0} offen")
                P("s_mov_b64 exec, -1")
            prev, new = items[c + 1], items[c + 2]
            if c == 6:
                self.retry(gc, "\n".join(gl))
                P(f"v_add_f32 v{CG}, v{CG}, v{CG+2}\nv_add_f32 v{CG+4}, v{CG+4}, v{CG+6}\nv_add_f32 v{CG}, v{CG}, v{CG+4}")
                P(f"v_cvt_pk_bf16_f32 v{CG+1}, v{CG}, v{CG}\nv_lshlrev_b32 v{CG+1}, 16, v{CG+1}\nv_sub_f32 v{CG+1}, v{CG}, v{CG+1}\nv_cvt_pk_bf16_f32 v{CG}, v{CG}, v{CG+1}")
                P(f"ds_write_b32 v15, v{CG}")
            self.tissue(prev[cut(prev):], "cap1")
            if c == 0:
                P("s_waitcnt lgkmcnt(0)")
                self.tag_check()
                P(f"v_mov_b32 v37, s{S_TAG}\ns_mov_b64 exec, 3")
                self.vmop("grst", f"buffer_store_dwordx4 {vr(V_GR,4)}, v22, {srd(S_WS)}, s{S_GR} offen sc1")
                P("s_mov_b64 exec, -1")
            if c == 6:
                h7 = self.opt("h7", 6)
                self.tissue(new[:h7], "cap1")
                self.lgall()
            else:
                self.tissue(new[:cut(new)], "cap1")
            if c < 3: csum(c + 1)
            if c == 2:
                P(f"v_permlane32_swap_b32 v{CS}, v{CS+1}\ns_cmp_lt_u32 s{S_CS}, 2\ns_cselect_b64 exec, -1, 0\nv_add_f32 v36, v{CS}, v{CS+1}")
                self.vmop("csst", f"buffer_store_dwordx2 v[36:37], v14, {srd(S_WS)}, s{S_PP} offen sc1")
                P("s_mov_b64 exec, -1")
            if c == 3: self.ph2_scalars(True)
        self.stamp("a7")
    def hflag(self, st):
        return f"s_buffer_load_dwordx8 s[{S_F16}:{S_F16+7}], {srd(S_WS)}, s{S_PF} offset:{32*st} glc"

    def ph2_scalars(self, isH):
        P = self.P
        if isH:
            P(f"""
            s_lshl1_add_u32 s{S_T0}, s{S_RB2}, s{S_KQ}
            s_lshl1_add_u32 s{S_T0}, s{S_T0}, s{S_RH}
            s_lshl3_add_u32 s{S_T0}, s{S_T0}, s{S_C}
            s_lshl_b32 s{S_T0}, s{S_T0}, 7
            s_add_u32 s{S_PF}, s{S_T0}, {WS_FL}
            s_lshl2_add_u32 s{S_T0}, s{S_RB2}, s{S_R}
            s_mul_i32 s{S_T0}, s{S_T0}, 144
            s_mul_i32 s{S_T1}, s{S_RH}, 56
            s_add_u32 s{S_T0}, s{S_T0}, s{S_T1}
            s_lshl_b32 s{S_AOFF}, s{S_T0}, 10
            s_lshl3_add_u32 s{S_T0}, s{S_RB2}, s{S_C}
            s_lshl2_add_u32 s{S_T0}, s{S_T0}, s{S_R}
            s_mul_i32 s{S_T0}, s{S_T0}, {6*K}
            s_add_u32 s{S_AF}, s{S_T0}, {WS_GX}
            s_sub_u32 s{S_T0}, s{S_RH}, s{S_KQ}
            s_mul_i32 s{S_T0}, s{S_T0}, {12*K}
            s_xor_b32 s{S_LA}, s{S_RH}, s{S_KQ}
            s_mul_i32 s{S_T1}, s{S_LA}, {3*K}
            s_add_u32 s{S_T0}, s{S_T0}, s{S_T1}
            s_add_u32 s{S_AO}, s{S_AF}, s{S_T0}
            v_xor_b32 v8, 64, v7
            v_add_u32 v9, 0x10000, v7
            v_add_u32 v10, 0x10000, v8
            v_mov_b32 v11, {T_CNT}
            """)
        else:
            P(f"""
            s_lshl1_add_u32 s{S_T0}, s{S_RB2}, s{S_RH}
            s_lshl1_add_u32 s{S_T1}, s{S_T0}, s{S_KQ}
            s_lshl3_add_u32 s{S_T1}, s{S_T1}, s{S_C}
            s_lshl_b32 s{S_T1}, s{S_T1}, 7
            s_add_u32 s{S_PF}, s{S_T1}, {WS_FL + FL_O}
            s_lshl1_add_u32 s{S_T0}, s{S_T0}, s{S_CH}
            s_mul_i32 s{S_T1}, s{S_T0}, 144
            s_lshl4_add_u32 s{S_T1}, s{S_KQ}, s{S_T1}
            s_add_u32 s{S_T1}, s{S_T1}, 112
            s_lshl_b32 s{S_AO}, s{S_T1}, 10
            s_lshl_b32 s{S_T0}, s{S_T0}, 15
            s_lshl1_add_u32 s{S_T1}, s{S_C}, s{S_KQ}
            s_lshl_b32 s{S_T1}, s{S_T1}, 6
            s_add_u32 s{S_OUTO}, s{S_T0}, s{S_T1}
            """)

    def MA(self):
        P = self.P
        hooks = self.m_hooks(4)
        def addr():
            P(f"""
            s_lshl_b32 s{S_T0}, s{S_RB}, 2
            s_add_u32 s{S_T0}, s{S_T0}, s{S_R}
            s_xor_b32 s{S_T2}, s{S_T0}, 1
            s_mul_i32 s{S_T0}, s{S_T0}, 144
            s_mul_i32 s{S_T2}, s{S_T2}, 144
            s_lshr_b32 s{S_T1}, s{S_CG}, 2
            s_mul_i32 s{S_T1}, s{S_T1}, 56
            s_add_u32 s{S_T0}, s{S_T0}, s{S_T1}
            s_add_u32 s{S_T2}, s{S_T2}, s{S_T1}
            s_and_b32 s{S_T1}, s{S_CG}, 3
            s_lshl_b32 s{S_T1}, s{S_T1}, 1
            s_add_u32 s{S_KW}, s{S_T0}, s{S_T1}
            s_add_u32 s{S_KW}, s{S_KW}, 48
            s_lshl_b32 s{S_KW}, s{S_KW}, 10
            s_add_u32 s{S_T1}, s{S_T1}, s{S_G}
            s_lshl_b32 s{S_T1}, s{S_T1}, 1
            s_add_u32 s{S_T0}, s{S_T0}, s{S_T1}
            s_add_u32 s{S_T2}, s{S_T2}, s{S_T1}
            s_lshl_b32 s{S_AOFF}, s{S_T0}, 10
            s_lshl_b32 s{S_KX}, s{S_T2}, 10
            """)
            self.ph2_scalars(False)
        hooks[(7, 2, 1)] = [lambda: P(f"v_mul_f32 v{V_GR}, {f2u(-LOG2E):#x}, v{V_GR+1}\nv_mul_f32 v{V_GR1}, {f2u(-LOG2E):#x}, v{V_GR1+1}")]
        corr = self.m_phase1(False, addr, hooks)
        P(corr(0))
        D = self.opt("pd", 2)
        for i in range(7):
            f, rho = (i >> 1, i & 1)
            g = (V_GR, V_GR1)[rho]
            acc = ACC + 16*i; E = 208; O = 224 + 8*(i & 1)
            for j in range(0, 16, 2): P(f"v_pk_mul_f32 {vr(E+j,2)}, {vr(acc+j,2)}, {vr(g,2)} op_sel_hi:[1,0]")
            for j in range(16):
                if i == 0 and j in (0, 4, 8): P(corr(1 + j // 4))
                P(f"v_exp_f32 v{E+j}, v{E+j}")
            for j in range(0, 16, 2): P(f"v_pk_fma_f32 {vr(E+j,2)}, {vr(E+j,2)}, {vr(g+2,2)}, {vr(g+2,2)} op_sel_hi:[1,0,0]")
            for j in range(16):
                if i == 0 and j in (0, 4, 8): P(corr(4 + j // 4))
                P(f"v_rcp_f32 v{E+j}, v{E+j}")
            for j in range(0, 16, 2): P(f"v_pk_mul_f32 {vr(E+j,2)}, {vr(acc+j,2)}, {vr(E+j,2)}")
            for j in range(8): P(f"v_cvt_pk_bf16_f32 v{O+j}, v{E+2*j}, v{E+2*j+1}")
            so = S_KW if f == 3 else (S_AOFF, S_KX)[rho]
            for a in range(2):
                if 'nost' in self.x: P("s_mov_b64 exec, 0")
                self.vmop(f"h{f}", f"buffer_store_dwordx4 {vr(O+4*a,4)}, v6, {srd(S_WS)}, s{so} offen offset:{a*1024} {'' if 'plain' in self.x else 'sc1'}")
                if 'nost' in self.x: P("s_mov_b64 exec, -1")
            if f < 2: P(f"s_add_u32 s{so}, s{so}, 16384")
            self.stamp(f"l{i}")
            if i == self.opt("ha", 3):
                P(f"v_mov_b32 v14, {T_CNT}"); self.cnt_add(12, 14, 15)
            for st in range(2):
                if i == min(6, 2*st + 1 + D):
                    self.vmwait(f"h{st}"); self.flag(37, S_FL, 32*st); self.stamp(f"f{st}")
        self.stamp(3)
        self.vmwait("h2"); self.flag(37, S_FL, 64); self.stamp("f2")
        P(f"s_add_u32 s{S_FL}, s{S_FL}, 96\ns_branch L_PH2M")
    def HA(self):
        self.h_phase1(False)
        self.P("s_branch L_PH2H")
    def HB(self):
        self.P.label("L_HB")
        self.h_phase1(True)

    def sm(self, Pr, out, m, c):
        d = {}
        d['max'] = [f"v_max3_f32 v{m}, v{Pr}, v{Pr+1}, v{Pr+2}", f"v_max3_f32 v{m+1}, v{Pr+3}, v{Pr+4}, v{Pr+5}",
                    f"v_max3_f32 v{m+2}, v{Pr+6}, v{Pr+7}, v{Pr+8}", f"v_max3_f32 v{m}, v{m}, v{Pr+9}, v{Pr+10}",
                    f"v_max3_f32 v{m+1}, v{m+1}, v{Pr+11}, v{Pr+12}", f"v_max3_f32 v{m+2}, v{m+2}, v{Pr+13}, v{Pr+14}",
                    f"v_max3_f32 v{m}, v{m}, v{m+1}, v{Pr+15}", f"v_max_f32 v{m}, v{m}, v{m+2}", f"v_mul_f32 v{m}, -v{c}, v{m}"]
        d['fma'] = [f"v_pk_fma_f32 {vr(Pr+j,2)}, {vr(Pr+j,2)}, {vr(c,2)}, {vr(m,2)} op_sel_hi:[1,0,0]" for j in range(0, 16, 2)]
        d['exp'] = [f"v_exp_f32 v{Pr+j}, v{Pr+j}" for j in range(16)]
        d['sum'] = self.sum16l(Pr, m) + [f"v_rcp_f32 v{m}, v{m}"]
        d['mul'] = [f"v_pk_mul_f32 {vr(Pr+j,2)}, {vr(Pr+j,2)}, {vr(m,2)} op_sel_hi:[1,0]" for j in range(0, 16, 2)]
        d['cvt'] = [f"v_cvt_pk_bf16_f32 v{out+j}, v{Pr+2*j}, v{Pr+2*j+1}" for j in range(8)]
        return d
    def emit(self, *lists):
        for L in lists:
            if isinstance(L, str): L = [L]
            for t in L: self.P(t)

    def MB(self):
        P = self.P; E = self.emit
        WP, SEL = 248, 72
        RR = [176, 192]
        AQ, AK, AV = 80, 112, 144
        GRS = (V_GR, V_GR1)
        hooks = self.m_hooks(3)
        def consts():
            P(f"""
            s_lshl_b32 s{S_T0}, s{S_CG}, 4
            s_add_u32 s{S_T0}, s{S_T0}, s{S_RB}
            s_mul_i32 s{S_T0}, s{S_T0}, {KVP_SZ}
            s_add_u32 s{S_T0}, s{S_T0}, {WS_KVP}
            s_xor_b32 s{S_T2}, s{S_RR}, 1
            s_lshl_b32 s{S_T1}, s{S_G}, 1
            s_add_u32 s{S_T1}, s{S_T1}, s{S_T2}
            s_lshl_b32 s{S_T2}, s{S_T1}, 10
            s_add_u32 s{S_KW}, s{S_T0}, s{S_T2}
            s_lshl_b32 s{S_T2}, s{S_T1}, 7
            s_add_u32 s{M_Z}, s{S_T0}, s{S_T2}
            s_add_u32 s{M_Z}, s{M_Z}, 4096
            s_lshl2_add_u32 s{S_PP}, s{S_CG}, s{S_T1}
            s_lshl_b32 s{S_PP}, s{S_PP}, 11
            s_lshl2_add_u32 s{S_PP}, s{S_RB}, s{S_PP}
            s_add_u32 s{S_PP}, s{S_PP}, {WS_FL + FL_KV}
            v_and_b32 v22, 0x13, v1
            v_and_b32 v25, 4, v1
            v_lshl_or_b32 v22, v25, 1, v22
            v_and_b32 v25, 8, v1
            v_lshrrev_b32 v25, 1, v25
            v_or_b32 v22, v22, v25
            v_lshlrev_b32 v3, 2, v22
            v_mov_b32 v56, -1
            v_mov_b32 v57, -1
            v_mov_b32 v58, -1
            v_mov_b32 v59, -1
            """)
            self.vmop("clr", f"buffer_store_dwordx4 v[56:59], v6, {srd(S_WS)}, s{S_KW} offen sc1")
            self.vmop("clr", f"buffer_store_dword v56, v3, {srd(S_WS)}, s{M_Z} offen sc1")
            P(f"""
            v_lshlrev_b32 v23, 4, v{V_H}
            v_sub_u32 v22, v22, v23
            v_ashrrev_i32 v32, 1, v22
            v_and_b32 v33, 1, v22
            v_lshlrev_b32 v33, 4, v33
            v_mov_b32 v22, 0x3f80
            v_lshlrev_b32 v33, v33, v22
            v_bfe_u32 v16, v1, 2, 2
            v_lshl_add_u32 v16, v{V_H}, 3, v16
            v_lshlrev_b32 v16, 5, v16
            v_bfe_u32 v22, v1, 4, 1
            v_lshl_add_u32 v16, v22, 4, v16
            v_bfe_u32 v22, v1, 1, 1
            v_lshl_add_u32 v16, v22, 3, v16
            s_lshl_b32 s{S_T0}, s{S_G}, 10
            s_lshl_b32 s{S_T1}, s{S_RR}, 9
            s_add_u32 s{S_T0}, s{S_T0}, s{S_T1}
            s_add_u32 s{S_T0}, s{S_T0}, {T_PHI}
            v_add_u32 v16, s{S_T0}, v16
            v_xor_b32 v15, 0x200, v16
            s_lshl_b32 s{S_T0}, s{S_R}, 9
            s_add_u32 s{S_T1}, s{S_T0}, {T_GR}
            v_lshlrev_b32 v17, 6, v{V_H}
            v_add_u32 v17, s{S_T1}, v17
            v_xor_b32 v18, 0x200, v17
            s_add_u32 s{S_T1}, s{S_T0}, {T_ZI}
            v_lshlrev_b32 v2, 3, v1
            v_add_u32 v2, s{S_T1}, v2
            v_bfe_u32 v19, v1, 2, 1
            v_mul_u32_u24 v19, 0x8000, v19
            v_lshl_or_b32 v19, v19, 16, v19
            v_and_b32 v11, 15, v1
            v_add_u32 v11, v11, v23
            v_lshlrev_b32 v11, 4, v11
            s_lshl_b32 s{S_T0}, s{S_R}, 11
            s_add_u32 s{S_T0}, s{S_T0}, {T_KVS}
            v_and_b32 v5, 0x2f0, v6
            v_add_u32 v5, s{S_T0}, v5
            v_min_u32 v12, 16, v{V_L31}
            v_mul_u32_u24 v12, {KVR}, v12
            v_lshl_add_u32 v12, v{V_H}, 5, v12
            v_add_u32 v12, s{S_T0}, v12
            v_xor_b32 v13, 0x1000, v12
            v_lshlrev_b32 v10, 1, v{V_L31}
            v_add_u32 v10, s{S_T0}, v10
            v_lshrrev_b32 v8, 4, v1
            v_and_b32 v9, 15, v1
            v_mul_u32_u24 v9, {KVR}, v9
            v_lshl_add_u32 v9, v8, 4, v9
            v_add_u32 v9, s{S_T0}, v9
            s_xor_b32 s{S_T0}, s{S_T0}, 0x1000
            v_add_u32 v4, s{S_T0}, v6
            s_lshl1_add_u32 s{S_T0}, s{S_G}, s{S_RR}
            s_mul_i32 s{S_T1}, s{S_T0}, {1024 - 128}
            s_sub_u32 s{S_T1}, 4096, s{S_T1}
            v_lshlrev_b32 v8, 2, v{V_L31}
            v_add_u32 v8, s{S_T1}, v8
            s_mul_i32 s{S_T1}, s{S_CG}, {16*KVP_SZ}
            s_lshl_b32 s{S_T2}, s{S_T0}, 10
            s_add_u32 s{S_T1}, s{S_T1}, s{S_T2}
            s_add_u32 s{M_PO}, s{S_T1}, {WS_KVP}
            s_lshl2_add_u32 s{S_T0}, s{S_CG}, s{S_T0}
            s_lshl4_add_u32 s{S_T0}, s{S_T0}, s{S_RB}
            s_lshl_b32 s{S_T0}, s{S_T0}, 7
            s_add_u32 s{M_KFL}, s{S_T0}, {WS_FL + FL_KV}
            s_mov_b32 s{M_PEND}, 0xffff
            s_mov_b32 s{M_RT}, 0
            s_lshl_b32 s{S_T0}, s{S_RB}, 2
            s_add_u32 s{S_T0}, s{S_T0}, s{S_R}
            s_xor_b32 s{S_T2}, s{S_T0}, 1
            s_mul_i32 s{S_T0}, s{S_T0}, 144
            s_mul_i32 s{S_T2}, s{S_T2}, 144
            s_lshl_b32 s{S_T1}, s{S_CG}, 2
            s_lshl_b32 s{S_T3}, s{S_G}, 1
            s_add_u32 s{S_T1}, s{S_T1}, s{S_T3}
            s_add_u32 s{S_T1}, s{S_T1}, s{S_RR}
            s_add_u32 s{S_T1}, s{S_T1}, 112
            s_add_u32 s{S_T0}, s{S_T0}, s{S_T1}
            s_add_u32 s{S_T2}, s{S_T2}, s{S_T1}
            s_lshl_b32 s{S_AOFF}, s{S_T0}, 10
            s_lshl_b32 s{S_LA}, s{S_T2}, 10
            """)
            self.ph2_scalars(False)
        def sel(j): return lambda: P(f"v_cmp_eq_u32 vcc, {j}, v32\nv_cndmask_b32 v{SEL+j}, 0, v33, vcc")
        for j in range(8): hooks.setdefault((3 + (j >> 2), j & 3, 5), []).append(sel(j))
        def phird(hh): return lambda: (self.lgop("phi", f"ds_read_b64_tr_b16 {vr(WP+4*hh,2)}, v{16-hh}"), self.lgop("phi", f"ds_read_b64_tr_b16 {vr(WP+4*hh+2,2)}, v{16-hh} offset:128"))
        hooks.setdefault((2, 2, 4), []).append(phird(0))
        hooks.setdefault((2, 2, 5), []).append(phird(1))
        def phix(k): return lambda: P(f"v_xor_b32 v{WP+2*k}, v19, v{WP+2*k}\nv_xor_b32 v{WP+2*k+1}, v19, v{WP+2*k+1}")
        for k in range(4): hooks.setdefault((3, k, 4), []).append(phix(k))
        hooks.setdefault((5, 1, 4), []).append(lambda: P(f"v_xor_b32 v15, 0x400, v2"))
        def rr(rho, k): return lambda: self.lgop("rm", f"ds_read2_b32 {vr(RR[rho]+2*k,2)}, v{17+rho} offset0:{(8*(k>>1)+2*(k&1))*4+1} offset1:{(8*(k>>1)+2*(k&1)+1)*4+1}")
        for k in range(8): hooks.setdefault((7, 1 + (k >> 2), 4 + ((k >> 1) & 1)), []).append(rr(0, k))
        for k in range(8): hooks.setdefault((7, 3, 2 + k // 3), []).append(rr(1, k))
        hooks.setdefault((7, 2, 1), []).append(lambda: P(f"v_mul_f32 v{V_GR}, {f2u(LOG2E):#x}, v{V_GR+1}\nv_mul_f32 v{V_GR1}, {f2u(LOG2E):#x}, v{V_GR1+1}"))
        corr = self.m_phase1(True, consts, hooks)
        KB = 40; PH = [56, 64]; M = 16; TT = 192; VBF = 176; KV = [144, 160]; ZT = 240
        PB = [224, 208, 112, 128]
        def kcvt(src, rho): return [f"v_cvt_pk_bf16_f32 v{KB+8*rho+j}, v{src+16*rho+2*j}, v{src+16*rho+2*j+1}" for j in range(8)]
        def pmf(u): return f"{MF} {vr(PB[u],16)}, {vr(WP+4*(u>>1),4)}, {vr(KB+8*(u&1)+4*(u>>1),4)}, 0"
        def tmf(u, h): return f"{MF} {vr(TT,16)}, {vr(PH[u&1]+4*h,4)}, {vr(SEL+4*h,4)}, {vr(TT,16) if h else '0'}"
        def kvmf(u, h):
            kv = vr(KV[u >> 1], 16)
            return f"{MF} {kv}, {vr(PH[u&1]+4*h,4)}, {vr(VBF+8*(u&1)+4*h,4)}, {'0' if (u == 0 and h == 0) else kv}"
        def tcvt(u): return [f"v_cvt_pk_bf16_f32 v{PH[u&1]+j}, v{TT+2*j}, v{TT+2*j+1}" for j in range(8)]
        def tsum(u): return self.sum16l(TT, ZT, 22 + u)
        k0, k1 = kcvt(AK, 0), kcvt(AK, 1)
        vm0 = [f"v_mul_f32 v{AV+j}, v{AV+j}, v{RR[0]+j}" for j in range(8)]
        vpk = [f"v_pk_mul_f32 {vr(AV+j,2)}, {vr(AV+j,2)}, {vr(RR[0]+j,2)}" for j in range(8, 32, 2)]
        vcvt = [f"v_cvt_pk_bf16_f32 v{VBF+j}, v{AV+2*j}, v{AV+2*j+1}" for j in range(16)]
        S = [self.sm(PB[u], PH[u & 1], M, GRS[u & 1]) for u in range(4)]
        E(corr(2), corr(3), corr(4), k0[:4], pmf(0), k0[4:], k1[:4], pmf(1), k1[4:], vm0[:4], corr(5), vm0[4:])
        s = S[0]
        E(s['max'], s['fma'], vpk, pmf(2), s['exp'][:4], pmf(3), s['exp'][4:8], corr(0), s['exp'][8:12], corr(1), s['exp'][12:], vcvt, s['sum'], s['mul'], s['cvt'])
        for u in range(1, 4):
            s = S[u]
            self.stamp(f"l{u}")
            if u >= 2: E(kvmf(u - 2, 1))
            E(s['max'], s['fma'], tmf(u - 1, 0), s['exp'][:4], tmf(u - 1, 1), s['exp'][4:8])
            if u == 3:
                P("v_add_f32 v22, v22, v23\nv_mov_b32 v23, 1")
                for j in range(8): P(f"v_permlane16_swap_b32 v{KV[0]+j}, v{KV[0]+8+j}")
                for q in range(2): P(f"ds_write_b128 v4, {vr(KV[0]+4*q,4)} offset:{q*1024}")
                P("ds_write_b64 v15, v[22:23]")
            E(s['exp'][8:], tcvt(u - 1), tsum(u - 1), s['sum'], s['mul'])
            if u < 3: E(kvmf(u - 1, 0))
            else:
                inb = ["ds_read_b64 v[22:23], v2"] + [f"ds_read_b128 {vr(KV[1]+4*q,4)}, v5 offset:{(q&1)*1024 + (q>>1)*256}" for q in range(4)]
                E(inb)
            E(s['cvt'])
        q0, q1 = kcvt(AQ, 0), kcvt(AQ, 1)
        self.stamp("l4")
        E(tmf(3, 0), q0[:6], tmf(3, 1), "s_waitcnt lgkmcnt(0)")
        self.retry("v_cmp_eq_u32 vcc, 0, v23", "\n".join(inb), wait="lgkmcnt(0)")
        kvl = f"s_buffer_load_dwordx16 s[{S_F16}:{S_F16+15}], {srd(S_WS)}, s{M_KFL} glc"
        E(q0[6:], q1[:2], kvmf(2, 0), q1[2:], kvmf(2, 1), tcvt(3), kvmf(3, 0))
        za = [f"v_add_f32 v{TT+j}, v{TT+j}, v{TT+8+j}" for j in range(8)] + [f"v_add_f32 v{TT+j}, v{TT+j}, v{TT+4+j}" for j in range(4)]
        za += [f"v_add_f32 v{TT}, v{TT}, v{TT+2}", f"v_add_f32 v{TT+1}, v{TT+1}, v{TT+3}", "v_add_f32 v22, v22, v24", f"v_add_f32 v{TT}, v{TT}, v{TT+1}", f"v_add_f32 v22, v22, v{TT}"]
        E(za[:6], kvmf(3, 1), za[6:], pmf(0), "v_mov_b32 v23, v22", "v_permlane32_swap_b32 v22, v23", "v_add_f32 v22, v22, v23")
        self.stamp("l5")
        self.vmop("kv", f"buffer_store_dword v22, v3, {srd(S_WS)}, s{M_Z} offen sc1")
        for j in range(8): P(f"v_cvt_pk_bf16_f32 v{PH[0]+j}, v{KV[1]+2*j}, v{KV[1]+2*j+1}")
        P(f"s_mov_b32 exec_lo, s{S_MASK}\ns_mov_b32 exec_hi, s{S_MASK}")
        for k in range(2):
            self.vmop("kv", f"buffer_store_dwordx4 {vr(PH[0]+4*k,4)}, v11, {srd(S_WS)}, s{S_KW} offen offset:{k*512} sc1")
        self.flag(37, S_PP, ex='0xffff')
        self.stamp("kvst")
        PQ = 80
        S = [self.sm(PB[u], PQ + 8*u, M, GRS[u & 1]) for u in range(4)]
        def qsm(u):
            s = S[u]
            ex = [pmf(1)] + s['exp'][:4] + [pmf(2)] + s['exp'][4:8] + [pmf(3)] + s['exp'][8:] if u == 0 else s['exp']
            return s['max'] + s['fma'] + ex + s['sum'] + s['mul'] + s['cvt']
        S2 = 72
        for u in range(4):
            if u == self.opt("kq", 2): P(kvl)
            E(qsm(u))
        P(f"v_lshl_add_u32 v32, v{V_H}, 2, v32")
        for j in range(4): P(f"v_cmp_eq_u32 vcc, {j}, v32\nv_cndmask_b32 v{S2+j}, 0, v33, vcc")
        P(f"v_mov_b32 v14, {T_CNT}")
        self.cnt_add(12, 14, 15)
        LD = 144; SU = 112; Z = 56
        mask = "\n".join(f"s_cmp_eq_u32 s{S_F16+j}, s{S_TAG}\ns_addc_u32 s{M_RDY}, s{M_RDY}, s{M_RDY}" for j in range(15, -1, -1))
        P(f"s_xor_b32 s{M_Z}, s{S_AOFF}, 1024\ns_xor_b32 s{S_KW}, s{S_LA}, 1024\ns_mov_b32 s{S_SPIN}, 0\ns_waitcnt lgkmcnt(0)\n{mask}")
        self.stamp(3)
        P(f"s_setprio {self.opt('mp', 3)}")
        def lds(k): return [f"buffer_load_dwordx4 {vr(LD+4*k,4)}, v6, {srd(S_WS)}, s{S_T3} offen sc1", f"buffer_load_dword v{Z+k}, v8, {srd(S_WS)}, s{S_T3} offen sc1"]
        for k in range(16):
            P(f"""
            s_mov_b32 s{M_KK}, {k}
            s_and_b32 s{S_T0}, s{M_RDY}, s{M_PEND}
            s_cbranch_scc0 L_KVPOLL
            L_KVR{k}:
            s_ff1_i32_b32 s{S_T2}, s{S_T0}
            s_bitset0_b32 s{M_PEND}, s{S_T2}
            s_mul_i32 s{S_T3}, s{S_T2}, {KVP_SZ}
            s_add_u32 s{S_T3}, s{S_T3}, s{M_PO}
            """)
            for c in lds(k): self.vmop(f"p{k}", c)
        self.stamp("gi"); self.sval("nsp", S_SPIN)
        P(f"s_lshl_b32 s{S_T0}, s{S_R}, 2\ns_add_u32 s{S_T0}, s{S_T0}, {T_CNT + 16}\nv_mov_b32 v14, s{S_T0}\nv_xor_b32 v15, 8, v14")
        P("L_GPROC:")
        for j in range(16):
            self.vmwait(f"p{j}")
            P(f"{MF} {vr(SU,16)}, {vr(S2,4)}, {vr(LD+4*j,4)}, {vr(SU,16) if j else '0'}")
            if j: P(f"v_add_f32 v{Z}, v{Z}, v{Z+j}")
        self.stamp(5)
        for k in range(4): P(f"v_cvt_pk_bf16_f32 v{24+k}, v{SU+2*k}, v{SU+2*k+1}")
        KA = 40
        ka = lambda a: [f"ds_read_b128 {vr(KA+8*a,4)}, v{12+a}", f"ds_read_b128 {vr(KA+8*a+4,4)}, v{12+a} offset:16"]
        P(f"""
        ds_write_b128 v9, v[24:27]
        v_cvt_pk_bf16_f32 v28, v{Z}, v{Z}
        ds_write_b16 v10, v28 offset:{16*KVR}
        v_cmp_u_f32 vcc, v{Z}, v{SU}
        s_cbranch_vccnz L_GRETRY
        L_GOK:
        ds_write_b32 v14, v14
        """)
        E(ka(0))
        pr = ["ds_read_b32 v29, v15"] + ka(1)
        E(pr)
        self.gretry = "\n".join(f"s_add_u32 s{S_T3}, s{M_PO}, {k*KVP_SZ}\n" + "\n".join(lds(k)) for k in range(16))
        disp = "\n".join(f"s_cmp_eq_u32 s{M_KK}, {k}\ns_cbranch_scc1 L_KVR{k}" for k in range(15, 0, -1))
        self.kvpoll = f"""
        L_KVPOLL:
        {kvl}
        s_add_u32 s{S_SPIN}, s{S_SPIN}, 1
        s_cmp_gt_u32 s{S_SPIN}, SPIN_MAX
        s_cselect_b32 s{S_T2}, -1, 0
        s_waitcnt lgkmcnt(0)
        {mask}
        s_or_b32 s{M_RDY}, s{M_RDY}, s{S_T2}
        s_and_b32 s{S_T0}, s{M_RDY}, s{M_PEND}
        s_cbranch_scc0 L_KVPOLL
        {disp}
        s_branch L_KVR0
        """
        self.stamp(6); self.sval("nrt", M_RT)
        OO = [128, 144, 160, 176]; OC = [64, 68, 72, 76]
        def omf(u):
            o = vr(OO[u], 16); a = u >> 1
            return [f"{MF} {o}, {vr(KA+8*a,4)}, {vr(PQ+8*u,4)}, 0", f"{MF} {o}, {vr(KA+8*a+4,4)}, {vr(PQ+8*u+4,4)}, {o}"]
        def opost(u):
            O = OO[u]
            L = [f"v_add_f32 v{O+8}, {f2u(1e-6):#x}, v{O+8}", f"v_rcp_f32 v{O+8}, v{O+8}"]
            L += [f"v_mul_f32 v{O+j}, v{O+j}, v{O+8}" for j in range(8)]
            L += [f"v_cvt_pk_bf16_f32 v{OC[u]+j}, v{O+2*j}, v{O+2*j+1}" for j in range(4)]
            return L
        def ost(u): self.vmop("o", f"buffer_store_dwordx4 {vr(OC[u],4)}, v6, {srd(S_WS)}, s{(S_AOFF, S_LA, M_Z, S_KW)[u]} offen sc1")
        m0_, m1_, m2_, m3_ = omf(0), omf(1), omf(2), omf(3)
        E("s_waitcnt lgkmcnt(3)", m0_[0], m0_[1], m1_[0], m1_[1], "s_waitcnt lgkmcnt(0)")
        self.retry("v_cmp_eq_u32 vcc, 0, v29", "\n".join(pr), wait="lgkmcnt(0)")
        p = opost(0); E(m2_[0], p[:6], m2_[1], p[6:]); ost(0)
        p = opost(1); E(m3_[0], p[:6], m3_[1], p[6:]); ost(1)
        E(opost(2)); ost(2)
        E(opost(3)); ost(3)
        self.stamp("ost")

    def phase2H(self):
        P = self.P; E = self.emit
        h7 = self.opt("h7", 6)
        self.vm = ["h1"] + ["h2"] * h7
        P("s_barrier")
        self.stamp(2)
        P(f"s_setprio {self.opt('hp2', 3)}")
        q = self.dma_w2(range(12 + h7, 28)) + self.dma_wo(range(8))
        n1 = self.opt("n1", 4); per = -(-(len(q) - n1) // 4)
        self.tissue(q[:n1])
        self.stamp("l1"); self.vmwait("h1"); self.lsync(0, 4); self.stamp("l2")
        for k in range(4):
            self.b_read(range(4*k, 4*k + 4), 7)
            self.tissue(q[n1 + k*per:n1 + (k+1)*per])
            P("s_waitcnt lgkmcnt(0)")
        self.stamp("l3"); self.lsync(0, 8); self.stamp("l4")
        self.tissue(self.dma_wo(range(8, 16)))
        AC = 16; RG = 64; D = self.opt("D", 12); PK = 192
        if 'vpoll' not in self.x:
            self.stamp("lw")
            P("s_waitcnt vmcnt(0)")
            self.cnt_add(4, 11, 12)
            self.stamp("l5")
            if 'nohold' not in self.x:
                P("ds_read_b32 v13, v11 offset:12"); self.lgall(); self.cnt_check(12, 11, 13)
            P(self.hflag(0))
            self.lgall(); self.sretry(range(S_F16, S_F16+8), self.hflag(0))
        else:
            vl = f"buffer_load_dword v13, v12, {srd(S_WS)}, s{S_PF} offen sc1"
            P(f"v_and_b32 v12, 7, v1\nv_lshlrev_b32 v12, 2, v12\n{vl}\ns_waitcnt vmcnt(0)")
            self.cnt_add(4, 11, 14)
            self.stamp("l5")
            self.retry(f"v_cmp_ne_u32 vcc, s{S_TAG}, v13", vl)
        self.stamp("js")
        P(f"s_setprio {self.opt('hp3', 2)}")
        sc = '' if 'pld' in self.x else 'sc1'
        def load(s):
            if s % 4 == 0 and s: P(f"s_add_u32 s{S_AOFF}, s{S_AOFF}, 4096")
            self.vmop(f"a{s}", f"buffer_load_dwordx4 {vr(RG + 4*(s % 16), 4)}, v6, {srd(S_WS)}, s{S_AOFF} offen offset:{(s % 4)*1024} {sc}")
        def bf(s, ct): return 128 + 8*(s if s < 16 else s % 4) + 4*ct
        for s in range(D):
            load(s)
            if s == self.opt("p1", 3): P(self.hflag(1))
        gh = f"s_buffer_load_dword s{S_F16}, {srd(S_WS)}, s{S_AO} offset:{3*K - 4} glc"
        chk = {16*st - D: st for st in (1, 2, 3)}
        pol = {16*st - D - self.opt("pl", 9): st for st in (2, 3)}
        for s in range(56):
            if s in chk:
                self.lgall(); self.sretry(range(S_F16, S_F16+8), self.hflag(chk[s]))
                self.stamp(f"f{chk[s]}")
            if s == 22:
                self.lgwait("cr"); self.cnt_check(4, 11, 13)
            self.vmwait(f"a{s}")
            self.lgwait(f"b{s}")
            if s % 8 == 0: self.stamp(f"s{s}")
            for ct in range(2):
                a = vr(AC + 16*ct, 16)
                P(f"{MF} {a}, {vr(bf(s, ct), 4)}, {vr(RG + 4*(s % 16), 4)}, {a if s else '0'}")
                if 16 <= s + 2 < 56:
                    for t in self.trd(bf(s + 2, ct), 7 + ct + 2*((s + 2) >> 5), ((s + 2) & 31) * 2048): self.lgop(f"b{s+2}", t)
                if ct == 0 and s in pol: P(self.hflag(pol[s]))
                if ct == 0 and s == 18: self.lgop("cr", "ds_read_b32 v13, v11 offset:4")
                if ct == 0 and s == 32: self.cnt_add(8, 11, 14)
                if ct == 0 and 40 <= s < 46: P(f"v_mov_b32 v{PK + 4*(s - 40) + 3}, s{S_TAG}")
                if ct == 0 and s == 52: P(f"s_lshl_b32 s{S_T0}, s{S_CH}, 13\ns_add_u32 s{S_T0}, s{S_T0}, {T_G}\nv_add_u32 v12, s{S_T0}, v6\ns_lshl_b32 s{S_T0}, s{S_CH}, 2\nv_add_u32 v14, s{S_T0}, v11")
                if ct == 0 and s == 54: self.lgop("cr", "ds_read_b32 v13, v11 offset:8")
            if s + D < 56: load(s + D)
        self.stamp(8)
        def pk(v): return PK + 12*(v >> 3) + 4*((v & 7) // 3) + (v & 7) % 3
        P(f"s_cmp_eq_u32 s{S_LA}, 0\ns_cbranch_scc1 L_OWN")
        for q_ in range(6):
            for v in range(16):
                if (pk(v) - PK) // 4 == q_: P(f"v_cvt_pk_bf16_f32 v{pk(v)}, v{AC + 2*v}, v{AC + 2*v + 1}")
            if q_ == 3: P(f"s_add_u32 s{S_AF}, s{S_AF}, {3*K}")
            P(f"buffer_store_dwordx4 {vr(PK + 4*q_, 4)}, v6, {srd(S_WS)}, s{S_AF} offen offset:{(q_ % 3)*1024} sc1")
        ho = ["ds_read_b32 v13, v14 offset:32"] + [f"ds_read_b128 {vr(AC + 4*k, 4)}, v12 offset:{k*1024}" for k in range(4)]
        P("v_add_u32 v12, 0x1000, v12")
        E(ho)
        P(gh)
        self.lgall()
        self.retry("v_cmp_eq_u32 vcc, 0, v13", "\n".join(ho), wait="lgkmcnt(0)")
        P("s_branch L_GFIN")
        P("L_OWN:")
        self.lgall(); self.cnt_check(8, 11, 13)
        for k in range(4): P(f"ds_write_b128 v12, {vr(AC + 16 + 4*k, 4)} offset:{4096 + k*1024}")
        P("ds_write_b32 v14, v14 offset:32")
        P(gh)
        self.lgall()
        P("L_GFIN:")
        PL = PK + 24
        gl = "\n".join(f"buffer_load_dwordx4 {vr(PL + 4*q_, 4)}, v6, {srd(S_WS)}, s{S_AO} offen offset:{q_*1024} sc1" for q_ in range(3))
        self.sretry([S_F16], gh)
        self.stamp("gx")
        P(gl)
        cond = [f"v_xor_b32 v13, s{S_TAG}, v{PL+3}", f"v_xor_b32 v14, s{S_TAG}, v{PL+7}", f"v_xor_b32 v15, s{S_TAG}, v{PL+11}", "v_or3_b32 v13, v13, v14, v15", "v_cmp_ne_u32 vcc, 0, v13"]
        P("s_waitcnt vmcnt(0)")
        self.retry("\n".join(cond), gl)
        self.stamp(9)
        EX = 64
        for h in range(2):
            r = range(8*h, 8*h + 8)
            for v in r: P(f"v_lshlrev_b32 v{EX+v}, 16, v{pk(v >> 1) + 24}" if v % 2 == 0 else f"v_and_b32 v{EX+v}, s{S_MASK}, v{pk(v >> 1) + 24}")
            for v in r: P(f"v_add_f32 v{AC+v}, v{AC+v}, v{EX+v}")
            for v in r: P(f"v_mul_f32 v{EX+v}, {f2u(-LOG2E):#x}, v{AC+v}")
            for v in r: P(f"v_exp_f32 v{EX+v}, v{EX+v}")
            for v in r: P(f"v_add_f32 v{EX+v}, 1.0, v{EX+v}")
            for v in r: P(f"v_rcp_f32 v{EX+v}, v{EX+v}")
            for v in r:
                P(f"v_mul_f32 v{AC+v}, v{AC+v}, v{EX+v}")
                if v % 4 == 3: P(f"ds_write_b128 v12, {vr(AC + v - 3, 4)} offset:{(v >> 2)*1024}")
        P("s_waitcnt lgkmcnt(0)")
        self.stamp("hb")
        P("s_barrier")
        self.stamp(10)

    def phase2M(self):
        P = self.P; E = self.emit
        AC = 16; OA = 64; XV = 48
        P(f"""
        v_mov_b32 v11, {T_CNT}
        ds_read_b32 v13, v11 offset:4
        s_cmp_eq_u32 s{S_KQ}, 0
        s_cselect_b32 s{S_T0}, {T_WOL}, 0
        s_lshl_b32 s{S_T1}, s{S_KQ}, 6
        v_xor_b32 v8, s{S_T1}, v7
        v_add_u32 v8, s{S_T0}, v8
        v_xor_b32 v9, 64, v8
        v_mov_b32 v37, s{S_TAG}
        v_lshlrev_b32 v{V_P0}, 7, v1
        v_and_b32 v10, 31, v1
        v_lshrrev_b32 v12, 5, v1
        v_lshlrev_b32 v10, 10, v10
        v_lshl_add_u32 v10, v12, 4, v10
        s_waitcnt lgkmcnt(0)
        """)
        self.cnt_check(4, 11, 13)
        self.stamp(4)
        n = self.opt("nw", 12)
        self.b_read(range(n), 8)
        P("s_waitcnt vmcnt(0)")
        self.flag(37, S_FL)
        self.stamp("ofl")
        for a in range(2): self.vmop("x", f"buffer_load_dwordx4 {vr(XV + 4*a, 4)}, v10, {srd(S_X)}, s{S_OUTO} offen offset:{32*a}")
        P("s_waitcnt lgkmcnt(0)")
        self.b_read(range(n, 16), 8)
        fl = self.hflag(0)
        P(f"""
        s_waitcnt lgkmcnt(0)
        {fl}
        s_lshl_b32 s{S_T0}, s{S_R}, 12
        s_add_u32 s{S_T0}, s{S_T0}, {T_X}
        v_add_u32 v14, s{S_T0}, v6
        v_xor_b32 v15, 0x2000, v14
        s_lshl1_add_u32 s{S_T0}, s{S_CH}, s{S_KQ}
        s_lshl_b32 s{S_T0}, s{S_T0}, 12
        s_add_u32 s{S_T0}, s{S_T0}, {T_G}
        v_add_u32 v12, s{S_T0}, v6
        s_waitcnt lgkmcnt(0)
        """)
        self.stamp(7)
        self.sretry(range(S_F16, S_F16+8), fl)
        self.stamp("y5")
        P(f"s_setprio {self.opt('mp2', 3)}")
        sc = '' if 'pld' in self.x else 'sc1'
        for s in range(16):
            if s % 4 == 0 and s: P(f"s_add_u32 s{S_AO}, s{S_AO}, 4096")
            self.vmop(f"a{s}", f"buffer_load_dwordx4 {vr(OA + 4*s, 4)}, v6, {srd(S_WS)}, s{S_AO} offen offset:{(s % 4)*1024} {sc}")
        P("ds_read_b32 v13, v11 offset:8")
        XU = 128
        xu = [t for k in range(8) for t in (f"v_lshlrev_b32 v{XU+2*k}, 16, v{XV+k}", f"v_and_b32 v{XU+1+2*k}, s{S_MASK}, v{XV+k}")]
        for s in range(16):
            self.vmwait(f"a{s}")
            for ct in (1, 0):
                a = vr(AC + 16*ct, 16)
                P(f"{MF} {a}, {vr(128 + 8*s + 4*ct, 4)}, {vr(OA + 4*s, 4)}, {a if s else '0'}")
                if s == 4 and ct == 1:
                    P("s_waitcnt lgkmcnt(0)"); self.cnt_check(8, 11, 13)
                if 6 <= s < 10 and ct == 1: E(xu[4*(s-6):4*(s-6)+4])
        self.stamp(8)
        for k in range(4): P(f"ds_write_b128 v14, {vr(AC + 16 + 4*k, 4)} offset:{k*1024}")
        P("s_waitcnt lgkmcnt(0)")
        self.stamp(9)
        P("s_barrier")
        self.stamp("fb")
        XI, GI = 64, 80
        for h in range(2):
            for k in (2*h, 2*h + 1): P(f"ds_read_b128 {vr(XI + 4*k, 4)}, v15 offset:{k*1024}")
            for k in (2*h, 2*h + 1): P(f"ds_read_b128 {vr(GI + 4*k, 4)}, v12 offset:{k*1024}")
        for h in range(2):
            r = range(8*h, 8*h + 8, 2)
            P(f"s_waitcnt lgkmcnt({6 - 4*h})")
            for k in r: P(f"v_pk_add_f32 {vr(AC+k,2)}, {vr(AC+k,2)}, {vr(XI+k,2)}")
            P(f"s_waitcnt lgkmcnt({4 - 4*h})")
            for k in r: P(f"v_pk_fma_f32 {vr(AC+k,2)}, {vr(AC+k,2)}, {vr(GI+k,2)}, {vr(XU+k,2)}")
            for k in r: P(f"v_cvt_pk_bf16_f32 v{XV + k//2}, v{AC+k}, v{AC+k+1}")
            P(f"buffer_store_dwordx4 {vr(XV + 4*h, 4)}, v10, {srd(S_OUT)}, s{S_OUTO} offen offset:{32*h} {'sc1' if 'outsc1' in self.x else ''}")
        self.stamp(10)

    def write_stamps(self):
        P = self.P
        if not self.stamps: return
        wg = self.opt("amp", -1)
        if wg >= 0:
            P(f"""
            s_waitcnt lgkmcnt(0)
            s_cmp_lg_u32 s2, {wg}
            s_cbranch_scc1 L_END
            s_cmp_lg_u32 s{S_WAVE}, {self.opt("ampw", 0)}
            s_cbranch_scc1 L_END
            s_sub_u32 s{S_T0}, s{S_ST+2}, s{S_ST}
            s_min_u32 s{S_T0}, s{S_T0}, 400000
            s_memrealtime s[{S_ST+4}:{S_ST+5}]
            L_AMP:
            s_memrealtime s[{S_ST+6}:{S_ST+7}]
            s_waitcnt lgkmcnt(0)
            s_sub_u32 s{S_T1}, s{S_ST+6}, s{S_ST+4}
            s_cmp_lt_u32 s{S_T1}, s{S_T0}
            s_cbranch_scc1 L_AMP
            """)
            return
        P(f"""
        s_memrealtime s[{S_ST+22}:{S_ST+23}]
        s_waitcnt lgkmcnt(0)
        s_lshl_b32 s{S_T0}, s2, 3
        s_add_u32 s{S_T0}, s{S_T0}, s{S_WAVE}
        s_lshl_b32 s{S_T0}, s{S_T0}, 6
        s_add_u32 s{S_T0}, s{S_T0}, {WS_STAMP}
        s_mov_b64 exec, 1
        """)
        for i in range(12):
            P(f"v_mov_b32 v13, s{S_ST+2*i}\nbuffer_store_dword v13, off, {srd(S_WS)}, s{S_T0} offset:{4*i}")

    def build(self):
        P = self.P
        if self.stamps:
            for i in range(12): P(f"s_mov_b32 s{S_ST+2*i}, 0")
        self.prologue()
        def sec(f, *a):
            self.vm = []; self.lg = []
            f(*a)
        sec(self.HA)
        sec(self.HB)
        P.label("L_PH2H")
        sec(self.phase2H)
        P("s_branch L_FIN")
        P.label("L_MA")
        sec(self.MA)
        P.label("L_MB")
        sec(self.MB)
        P.label("L_PH2M")
        sec(self.phase2M)
        P.label("L_FIN")
        self.write_stamps()
        P.label("L_END")
        P("s_endpgm")
        P(self.kvpoll)
        self.slow_paths()
        P(f"""
        L_GRETRY:
        s_add_u32 s{M_RT}, s{M_RT}, 1
        s_cmp_gt_u32 s{M_RT}, 1000
        s_cbranch_scc1 L_GOK
        {self.gretry}
        s_waitcnt vmcnt(0)
        s_branch L_GPROC
        """)
        P.fix_hazards()
        hdr = open("recurrent_scan__linear_kernel_hedgehog__dense_activation_silu__prompt.s.ref").read().split("; Override")[0]
        out = hdr + f"; @launch grid=(256,1,1) block=(512,1,1) lds={LDS_BYTES}\n"
        out += f'.amdgcn_target "amdgcn-amd-amdhsa--gfx950"\n.set SPIN_MAX, 200000\n.set CODE_BYTES, L_CODE_END - {KNAME} - 2048\n.text\n.globl {KNAME}\n.p2align 8\n.type {KNAME},@function\n{KNAME}:\n'
        out += P.text()
        out += ".rept 512\ns_nop 0\n.endr\nL_CODE_END:\ns_endpgm\n"
        out += f""".section .rodata,"a"
.p2align 6
.amdhsa_kernel {KNAME}
  .amdhsa_next_free_vgpr 256
  .amdhsa_next_free_sgpr 102
  .amdhsa_accum_offset 256
  .amdhsa_group_segment_fixed_size 0
  .amdhsa_kernarg_size 80
  .amdhsa_user_sgpr_count 2
  .amdhsa_user_sgpr_kernarg_segment_ptr 1
  .amdhsa_system_sgpr_workgroup_id_x 1
.end_amdhsa_kernel
"""
        return out

if __name__ == "__main__":
    import argparse
    ap = argparse.ArgumentParser()
    ap.add_argument("-o", default="recurrent_scan__linear_kernel_hedgehog__dense_activation_silu__prompt.s")
    ap.add_argument("--stamps", default="")
    ap.add_argument("-x", default="")
    a = ap.parse_args()
    open(a.o, "w").write(Gen(stamps=a.stamps.split(",") if a.stamps else None, x=a.x.split(",")).build())
```

```python
import sys, struct
from asmlib import Prog, Ins, sizes_of

KNAME = "recurrent_scan__linear_kernel_hedgehog__dense_activation_silu__prompt_kernel"

WS_KVP = 0x00A00000
KVP_SZ = 4608
WS_FL = 0x00B80000
FL_O, FL_KV = 0x20000, 0x40000
WS_GR = 0x00B10000
WS_CS = 0x00B20000
WS_STAMP = 0x00C00000
WS_GX = 0x01000000
WS_BYTES = 0x01800000

K = 1024
SLOT = 48 * K
T_WOL, T_G, T_X = 112 * K, 32 * K, 48 * K
T_CNT = 158 * K
T_ZI = 156 * K
T_CS = 159 * K
T_KVS = 144 * K
T_PHI = 152 * K
T_GR = 154 * K
T_ST = T_CNT + 64
LDS_BYTES = 160 * K
KVR = 80
KVH = 17 * KVR

LOG2E = 1.4426950408889634
def f2u(x): return struct.unpack("<I", struct.pack("<f", x))[0]

S_X, S_W, S_W2, S_WO, S_WS, S_OUT = 8, 12, 16, 20, 24, 28
S_PHI, S_DBG = 32, 34
S_XOFF2, S_WOFF2, S_XOFF, S_WOFF, S_LX, S_LW, S_CSO, S_USTR, S_P8, S_IDX, S_KX, S_RB = range(36, 48)
S_F16 = 32
S_F = 12
S_TP, S_RA = 20, 22
S_KQ, S_CH = 52, 53
S_WAVE, S_R, S_CG, S_TYPE = 99, 100, 101, 61
S_T0, S_T1, S_T2, S_T3 = 48, 49, 50, 51
S_CS, S_RH, S_C = 54, 55, 56
S_RB2 = S_RB
S_BOFF, S_LB, S_BOFFO = 57, 58, 59
S_TAG = 60
S_KW = 62
S_AOFF, S_LA = 63, 64
S_SPIN = 65
S_MASK = 66
S_GR = 67
S_EX = 68
S_FL, S_PF = 70, 71
S_ST = 72
S_G, S_RR = 96, 97
S_BOFFM, S_BOFFOM = 96, 97
S_PP = 98
S_AF, S_AO, S_OD, S_OFL, S_OUTO = 3, 4, 5, 6, 7
S_GRP, S_PITCH, S_WCOL = 3, 4, 5
S_SW = 0
M_Z = 57
M_PO, M_PEND, M_RDY, M_KK, M_RT, M_KFL = 96, 5, 0, 1, 6, 97

V_L31, V_H = 20, 21
V_GR = 34
V_GR1 = 28
V_P0, V_P1 = 38, 39
XA = 192
WA = 200
XB = [40, 48]
WBUF = [208, 224]
NM = [56, 60]
CSR = 64
ACC = 80
def slot(c): return ((c + 1) % 3) * SLOT

def srd(b): return f"s[{b}:{b+3}]"
def vr(b, n): return f"v[{b}:{b+n-1}]"
MF = "v_mfma_f32_32x32x16_bf16"

def w2rows(j):
    return ((j & 7) >> 1) * 224 + ((j >> 3) + 4 * (j & 1)) * 32 if j < 24 else (j - 24) * 224 + 96

class Gen:
    def __init__(self, stamps=None, x=()):
        self.P = Prog(); self.stamps = stamps
        self.nlab = 0; self.x = set(x); self.vm = []; self.lg = []; self.slow = []; self.hot = False
    def opt(self, name, d):
        for a in self.x:
            if a.startswith(name + "="): return int(a.split("=")[1])
        return d
    def lab(self, p="L"):
        self.nlab += 1; return f"{p}_{self.nlab}"
    def stamp(self, name):
        name = str(name)
        if self.stamps and name in self.stamps:
            i = self.stamps.index(name)
            self.P(f"{'s_memrealtime' if 'rt' in self.x else 's_memtime'} s[{S_ST+2*i}:{S_ST+2*i+1}]")
    def stxt(self, name):
        if self.stamps and name in self.stamps:
            i = self.stamps.index(name)
            return f"{'s_memrealtime' if 'rt' in self.x else 's_memtime'} s[{S_ST+2*i}:{S_ST+2*i+1}]"
        return ""
    def sval(self, name, reg):
        if self.stamps and name in self.stamps:
            self.P(f"s_add_u32 s{S_ST+2*self.stamps.index(name)}, s{S_ST}, s{reg}")
    def vmop(self, tag, code):
        self.P(code); self.vm.append(tag)
    def vmwait(self, *tags, extra=""):
        last = max(i for i, t in enumerate(self.vm) if t in tags)
        n = min(63, len(self.vm) - 1 - last)
        self.P(f"s_waitcnt vmcnt({n}){extra}")
    def issue(self, L):
        for tag, code in L: self.vmop(tag, code)
    def lgop(self, tag, code):
        self.P(code); self.lg.append(tag)
    def lgwait(self, *tags):
        idx = [i for i, t in enumerate(self.lg) if t in tags]
        if not idx: return
        n = len(self.lg) - 1 - max(idx)
        self.P(f"s_waitcnt lgkmcnt({min(n,15)})")
        self.lg = self.lg[len(self.lg) - min(n, 15):] if n else []
    def lgall(self, extra=""):
        self.P("s_waitcnt lgkmcnt(0)" + extra); self.lg = []
    def retry(self, cond_code, reload_code, post="", wait="vmcnt(0) lgkmcnt(0)"):
        l = self.lab("SL"); e = self.lab("SE")
        self.P(f"{cond_code}\ns_cbranch_vccnz {l}\n{e}:")
        self.slow.append((l, e, cond_code, reload_code, post, wait, self.hot))
    def scond(self, n):
        if n == 1: return [f"s_cmp_lg_u32 s{S_F}, s{S_TAG}", "s_cselect_b64 vcc, -1, 0"]
        tp = f"s[{S_TP}:{S_TP+1}]"; t = f"s[{S_RA}:{S_RA+1}]"
        L = [f"s_xor_b64 vcc, s[{S_F}:{S_F+1}], {tp}"]
        for r in range(S_F + 2, S_F + n, 2): L += [f"s_xor_b64 {t}, s[{r}:{r+1}], {tp}", f"s_or_b64 vcc, vcc, {t}"]
        return L
    def sretry(self, n, load):
        self.retry("\n".join(self.scond(n)), load, wait="lgkmcnt(0)")
    def tagpair(self): self.P(f"s_mov_b32 s{S_TP}, s{S_TAG}\ns_mov_b32 s{S_TP+1}, s{S_TAG}")
    def slow_paths(self):
        P = self.P
        self.mark("S")
        self.slow.sort(key=lambda t: not t[6])
        for n, (l, e, cond, reload_, post, wait, hot) in enumerate(self.slow):
            if not hot and self.slow[n - 1][6]: self.mark("N")
            l2 = self.lab("SLL"); l3 = self.lab("SLP")
            P(f"""
            {l}:
            s_mov_b32 s{S_SPIN}, 0
            {l2}:
            {reload_}
            s_add_u32 s{S_SPIN}, s{S_SPIN}, 1
            s_waitcnt {wait}
            {cond}
            s_cmp_gt_u32 s{S_SPIN}, SPIN_MAX
            s_cbranch_scc1 {l3}
            s_cbranch_vccnz {l2}
            {l3}:
            {post}
            s_branch {e}
            """)
    def flag(self, tagreg, soff, off=0, ex="0xff"):
        P = self.P
        P(f"s_mov_b64 exec, {ex}")
        self.vmop("flag", f"buffer_store_dword v{tagreg}, v{V_P0}, {srd(S_WS)}, s{soff} offen offset:{off} sc1")
        P("s_mov_b64 exec, -1")

    def prologue(self):
        P = self.P
        self.stamp(0)
        P(f"""
        s_load_dwordx4 s[{S_X}:{S_X+3}], s[0:1], 0
        s_load_dwordx4 s[{S_W2}:{S_W2+3}], s[0:1], 40
        v_lshrrev_b32 v2, 6, v0
        v_and_b32 v1, 63, v0
        v_lshlrev_b32 v6, 4, v1
        v_readfirstlane_b32 s{S_WAVE}, v2
        s_cmp_ge_u32 s2, 256
        s_cbranch_scc1 L_END
        s_lshr_b32 s{S_IDX}, s2, 3
        s_and_b32 s{S_R}, s{S_WAVE}, 3
        s_getpc_b64 s[{S_EX}:{S_EX+1}]
        s_lshl_b32 s{S_T2}, s{S_IDX}, 10
        s_lshl_b32 s{S_T3}, s{S_WAVE}, 15
        s_add_u32 s{S_T2}, s{S_T2}, s{S_T3}
        s_add_u32 s{S_EX}, s{S_EX}, s{S_T2}
        s_addc_u32 s{S_EX+1}, s{S_EX+1}, 0
        s_cmp_ge_u32 s{S_T2}, CODE_BYTES
        s_cbranch_scc1 L_NOPF2
        global_load_dwordx4 v[60:63], v6, s[{S_EX}:{S_EX+1}]
        L_NOPF2:
        s_load_dwordx4 s[{S_PHI}:{S_PHI+3}], s[0:1], 16
        s_load_dwordx4 s[{S_OUT}:{S_OUT+3}], s[0:1], 56
        s_load_dwordx2 s[{S_WS}:{S_WS+1}], s[0:1], 72
        s_bfe_u32 s{S_GRP}, s2, {0x10000 + self.opt("gb", 1):#x}
        s_and_b32 s{S_CS}, s{S_IDX}, 3
        s_and_b32 s{S_T2}, s2, 6
        s_lshl1_add_u32 s{S_RB}, s{S_T2}, s{S_CS}
        s_lshr_b32 s{S_TYPE}, s{S_IDX}, 4
        s_bfe_u32 s{S_T2}, s{S_IDX}, 0x20002
        s_and_b32 s{S_RH}, s2, 1
        s_lshl2_add_u32 s{S_CG}, s{S_RH}, s{S_T2}
        s_lshl_b32 s{S_T1}, s{S_GRP}, 9
        s_lshl_b32 s{S_T0}, s{S_TYPE}, 9
        s_sub_u32 s{S_PITCH}, 3584, s{S_T0}
        s_mul_i32 s{S_T2}, s{S_CG}, 7
        s_lshr_b32 s{S_T2}, s{S_T2}, 1
        s_movk_i32 s{S_USTR}, 128
        s_mov_b32 s{S_W+2}, 0x1c0000
        s_cmp_lg_u32 s{S_TYPE}, 0
        s_cselect_b32 s{S_T2}, s{S_CG}, s{S_T2}
        s_cselect_b32 s{S_USTR}, 1024, s{S_USTR}
        s_cselect_b32 s{S_W+2}, 0x180000, s{S_W+2}
        s_lshl_b32 s{S_WCOL}, s{S_T2}, 7
        s_mul_i32 s{S_T3}, s{S_GRP}, s{S_PITCH}
        s_lshl_b32 s{S_T3}, s{S_T3}, 8
        s_mov_b32 s{S_W+3}, 0x20000
        v_and_b32 v{V_L31}, 31, v1
        v_lshrrev_b32 v{V_H}, 5, v1
        s_lshl_b32 s{S_LX}, s{S_R}, 12
        s_cmp_lt_u32 s{S_WAVE}, 4
        s_cbranch_scc0 L_H0
        v_lshlrev_b32 v11, 4, v{V_L31}
        v_lshl_add_u32 v11, v{V_H}, 10, v11
        s_lshl3_add_u32 s{S_T0}, s{S_TYPE}, s{S_CG}
        s_lshl2_add_u32 s{S_T0}, s{S_T0}, s{S_R}
        s_lshl_b32 s{S_T0}, s{S_T0}, 11
        s_lshl_b32 s{S_T2}, s{S_RB}, 17
        s_add_u32 s{S_KX}, s{S_T0}, s{S_T2}
        """)
        self.stamp("pre")
        self.srd_xw()
        self.stamp("ka")
        P(f"""
        buffer_load_dwordx4 v[64:67], v11, {srd(S_X)}, s{S_KX} offen
        buffer_load_dwordx4 v[68:71], v11, {srd(S_X)}, s{S_KX} offen offset:512
        s_cbranch_scc1 L_MB
        s_branch L_MA
        L_H0:
        v_lshrrev_b32 v7, 3, v1
        v_and_b32 v8, 7, v1
        v_lshrrev_b32 v9, 4, v1
        v_xor_b32 v10, v8, v9
        v_lshlrev_b32 v10, 4, v10
        v_lshl_add_u32 v2, v7, 10, v10
        v_xor_b32 v3, 0x2040, v2
        v_and_b32 v9, 1, v9
        v_lshlrev_b32 v9, 2, v9
        v_xor_b32 v10, v8, v9
        v_lshlrev_b32 v10, 4, v10
        v_mad_u32_u24 v4, v7, s{S_PITCH}, v10
        s_lshl2_add_u32 s{S_XOFF}, s{S_RB}, s{S_R}
        s_lshl_b32 s{S_XOFF}, s{S_XOFF}, 15
        s_sub_u32 s{S_XOFF2}, s{S_XOFF}, s{S_T1}
        s_add_u32 s{S_XOFF}, s{S_XOFF}, s{S_T1}
        s_add_u32 s{S_KX}, s{S_XOFF}, 16384
        s_add_u32 m0, s{S_LX}, {slot(0)}
        s_lshl_b32 s{S_P8}, s{S_PITCH}, 3
        s_mul_i32 s{S_WOFF}, s{S_R}, s{S_P8}
        s_lshl1_add_u32 s{S_WOFF}, s{S_WOFF}, s{S_WCOL}
        s_sub_u32 s{S_WOFF2}, s{S_WOFF}, s{S_T3}
        s_add_u32 s{S_WOFF}, s{S_WOFF}, s{S_T3}
        s_lshl_b32 s{S_LW}, s{S_R}, 11
        s_add_u32 s{S_LW}, s{S_LW}, 0x4000
        s_mov_b32 s{S_KW}, s{S_WOFF}
        """)
        self.stamp("pre")
        self.srd_xw()
        self.stamp("ka")
        for i in range(4):
            if i: P(f"s_add_u32 m0, s{S_LX}, {slot(0) + i*1024}")
            P(f"buffer_load_dwordx4 v{2+(i&1)}, {srd(S_X)}, s{S_XOFF if i < 2 else S_KX} offen lds")
        for u in range(4):
            if u == 3: P(f"v_lshl_add_u32 v5, v7, 10, v10\ns_cmp_lg_u32 s{S_TYPE}, 0\ns_cbranch_scc1 L_HB")
            P(f"s_add_u32 m0, s{S_LW}, {slot(0) + u*8192}\ns_add_u32 s{S_KX}, s{S_KW}, s{S_P8}\nbuffer_load_dwordx4 v4, {srd(S_W)}, s{S_KW} offen lds")
            P(f"s_add_u32 m0, s{S_LW}, {slot(0) + u*8192 + 1024}\ns_add_u32 s{S_KW}, s{S_KW}, s{S_USTR}\nbuffer_load_dwordx4 v4, {srd(S_W)}, s{S_KX} offen lds")
    def srd_xw(self):
        self.P(f"""
        s_cmp_lg_u32 s{S_TYPE}, 0
        s_waitcnt lgkmcnt(0)
        s_cselect_b32 s{S_W}, s{S_X+2}, s{S_W2}
        s_cselect_b32 s{S_W+1}, s{S_X+3}, s{S_W2+1}
        s_mov_b32 s{S_X+2}, 0x200000
        s_mov_b32 s{S_X+3}, 0x20000
        """)
    def pf_bases(self):
        self.P(f"""
        s_lshl2_add_u32 s{S_T0}, s{S_CS}, s{S_R}
        s_mul_i32 s{S_T0}, s{S_T0}, s{S_PITCH}
        s_lshl2_add_u32 s{S_T0}, s{S_T0}, s{S_WCOL}
        s_add_u32 s{S_SW}, s{S_T0}, s{S_T3}
        """)
    def pf_w2(self, a0, a1):
        P = self.P
        if 'nor3' not in self.x and 'nor3w' not in self.x:
            P(f"s_lshl_b32 s{S_T0}, s{S_R}, 5\ns_add_u32 s{S_T0}, s{S_T0}, s{S_IDX}\ns_lshl_b32 s{S_T0}, s{S_T0}, 10\nv_lshlrev_b32 v{a0}, 17, v1\ns_mul_i32 s{S_T1}, s{S_RH}, {896*K}\ns_add_u32 s{S_T1}, s{S_T1}, s{S_T0}")
            self.vmop("r3", f"s_mov_b64 exec, 0x7f\nbuffer_load_dword v27, v{a0}, {srd(S_W2)}, s{S_T1} offen offset:384")
            self.vmop("r3", f"s_mov_b64 exec, 15\nbuffer_load_dword v27, v{a0}, {srd(S_WO)}, s{S_T0} offen offset:384\ns_mov_b64 exec, -1")
        if 'nopf' not in self.x and 'nogs' not in self.x:
            P(f"s_lshl2_add_u32 s{S_T0}, s2, s{S_R}\ns_lshl_b32 s{S_T1}, s{S_T0}, 9\ns_mul_i32 s{S_T0}, s{S_T0}, 1792\nv_lshlrev_b32 v{a1}, 7, v1")
            self.vmop("r3", f"s_mov_b64 exec, 0x3fff\nbuffer_load_dword v27, v{a1}, {srd(S_W2)}, s{S_T0} offen")
            self.vmop("r3", f"s_mov_b64 exec, 15\nbuffer_load_dword v27, v{a1}, {srd(S_WO)}, s{S_T0+1} offen\ns_mov_b64 exec, -1")
    def pf_xcd(self, c, a):
        P = self.P
        def go(srdb, base, n, parts, k, sc=""):
            lo, hi = n * k // parts, n * (k + 1) // parts
            m = ((1 << hi) - 1) ^ ((1 << lo) - 1)
            P(f"s_lshl2_add_u32 s{S_T0}, s{S_IDX}, s{S_R}\n{base}\nv_lshlrev_b32 v{a}, 7, v1\ns_mov_b32 exec_lo, {m & 0xffffffff:#x}\ns_mov_b32 exec_hi, {m >> 32:#x}")
            self.vmop("r3", f"buffer_load_dword v27, v{a}, {srd(srdb)}, s{S_T0} offen {sc}")
            P("s_mov_b64 exec, -1")
        for nm, nn, srdb, n, base, sc in (
            ("pw", "nw2", S_W2, 56, f"s_mul_i32 s{S_T0}, s{S_T0}, 7168\ns_mul_i32 s{S_T1}, s{S_RH}, {896*K}\ns_add_u32 s{S_T0}, s{S_T0}, s{S_T1}", ""),
            ("po", "no2", S_WO, 32, f"s_lshl_b32 s{S_T0}, s{S_T0}, 12", ""),
            ("ph", "nh2", S_WS, 56, f"s_and_b32 s{S_T1}, s{S_T0}, 7\ns_lshl3_add_u32 s{S_T1}, s{S_RH}, s{S_T1}\ns_mul_i32 s{S_T1}, s{S_T1}, 7\ns_lshr_b32 s{S_T0}, s{S_T0}, 3\ns_and_b32 s{S_T2}, s2, 6\ns_lshl3_add_u32 s{S_T0}, s{S_T2}, s{S_T0}\ns_mul_i32 s{S_T0}, s{S_T0}, 144\ns_add_u32 s{S_T0}, s{S_T0}, s{S_T1}\ns_lshl_b32 s{S_T0}, s{S_T0}, 10", "sc1")):
            p0 = self.opt(nm, 99); parts = self.opt(nn, 1)
            if p0 <= c < p0 + parts: go(srdb, base, n, parts, c - p0, sc)
    def late_consts(self):
        P = self.P
        P(f"""
        s_mov_b32 s{S_WO}, s{S_PHI+2}
        s_mov_b32 s{S_WO+1}, s{S_PHI+3}
        s_mov_b32 s{S_DBG}, s{S_OUT+2}
        s_mov_b32 s{S_DBG+1}, s{S_OUT+3}
        s_mov_b32 s{S_MASK}, 0xffff0000
        s_lshr_b32 s{S_C}, s{S_IDX}, 2
        s_bfe_u32 s{S_T0}, s2, {0x10000 + 3 - self.opt("gb", 1):#x}
        s_lshl2_add_u32 s{S_CS}, s{S_T0}, s{S_CS}
        s_mov_b32 s{S_OUT+2}, 0x200000
        s_mov_b32 s{S_OUT+3}, 0x20000
        s_mov_b32 s{S_WO+2}, 0x80000
        s_mov_b32 s{S_WO+3}, 0x20000
        s_mov_b32 s{S_W2}, s{S_W2+2}
        s_mov_b32 s{S_W2+1}, s{S_W2+3}
        s_mov_b32 s{S_W2+2}, 0x1c0000
        s_mov_b32 s{S_W2+3}, 0x20000
        s_add_u32 s{S_WS}, s{S_WS}, {self.opt("wsoff", 0) << 20:#x}
        s_addc_u32 s{S_WS+1}, s{S_WS+1}, 0
        s_mov_b32 s{S_WS+2}, {WS_BYTES}
        s_mov_b32 s{S_WS+3}, 0x20000
        s_and_b32 s{S_CH}, s{S_R}, 1
        s_lshr_b32 s{S_KQ}, s{S_R}, 1
        v_bfe_u32 v22, v1, 2, 2
        v_lshl_add_u32 v22, v{V_H}, 3, v22
        v_bfe_u32 v23, v1, 4, 1
        v_lshlrev_b32 v23, 5, v23
        v_and_b32 v24, 1, v1
        v_lshl_add_u32 v23, v24, 4, v23
        v_bfe_u32 v24, v1, 1, 1
        v_lshl_add_u32 v23, v24, 3, v23
        v_bfe_u32 v24, v1, 3, 1
        v_lshl_add_u32 v23, v24, 6, v23
        v_lshl_add_u32 v7, v22, 7, v23
        """)
    def tile_addr(self, dst, tau_sgpr, extra):
        P = self.P
        P(f"""
        s_and_b32 s{S_T0}, s{tau_sgpr}, 1
        s_lshl_b32 s{S_T0}, s{S_T0}, 6
        v_xor_b32 v{dst}, s{S_T0}, v7
        s_lshr_b32 s{S_T0}, s{tau_sgpr}, 1
        s_lshl_b32 s{S_T0}, s{S_T0}, 13
        s_add_u32 s{S_T0}, s{S_T0}, {extra}
        v_add_u32 v{dst}, s{S_T0}, v{dst}
        """)
    def lsync(self, cnt_off, target):
        P = self.P
        l = self.lab("LS"); e = self.lab("LSE")
        P(f"""
        v_mov_b32 v{V_P0}, {T_CNT + cnt_off}
        v_mov_b32 v{V_P1}, 1
        s_mov_b64 exec, 1
        ds_add_u32 v{V_P0}, v{V_P1}
        s_mov_b32 s{S_SPIN}, 0
        {l}:
        ds_read_b32 v{V_P1}, v{V_P0}
        s_add_u32 s{S_SPIN}, s{S_SPIN}, 1
        s_waitcnt lgkmcnt(0)
        v_readfirstlane_b32 s{S_T0}, v{V_P1}
        s_cmp_gt_u32 s{S_SPIN}, SPIN_MAX
        s_cbranch_scc1 {e}
        s_cmp_lt_u32 s{S_T0}, {target}
        s_cbranch_scc1 {l}
        {e}:
        s_mov_b64 exec, -1
        """)
    def row_stats(self):
        P = self.P
        U = 80
        for k in range(8):
            P(f"v_lshlrev_b32 v{U+2*k}, 16, v{64+k}\nv_and_b32 v{U+2*k+1}, s{S_MASK}, v{64+k}")
        def allred(r, t):
            for m in ("quad_perm:[1,0,3,2]", "quad_perm:[2,3,0,1]", "row_half_mirror", "row_mirror"):
                P(f"v_add_f32_dpp v{r}, v{r}, v{r} {m} row_mask:0xf bank_mask:0xf")
            P(f"v_mov_b32 v{t}, v{r}\nv_permlane16_swap_b32 v{r}, v{t}\nv_add_f32 v{r}, v{r}, v{t}")
        self.sum16(U, 64, 34)
        allred(34, 64)
        P(f"v_mul_f32 v34, {f2u(1/512):#x}, v34")
        for k in range(8):
            P(f"v_pk_add_f32 v[{U+2*k}:{U+2*k+1}], v[{U+2*k}:{U+2*k+1}], v[34:35] op_sel_hi:[1,0] neg_lo:[0,1] neg_hi:[0,1]")
        P(f"v_pk_mul_f32 v[64:65], v[{U}:{U+1}], v[{U}:{U+1}]\nv_pk_mul_f32 v[66:67], v[{U+2}:{U+3}], v[{U+2}:{U+3}]")
        for k in range(2, 8):
            d = 64 + 2*(k & 1)
            P(f"v_pk_fma_f32 v[{d}:{d+1}], v[{U+2*k}:{U+2*k+1}], v[{U+2*k}:{U+2*k+1}], v[{d}:{d+1}]")
        P(f"v_pk_add_f32 v[64:65], v[64:65], v[66:67]\nv_add_f32 v36, v64, v65")
        allred(36, 64)
        P(f"v_mov_b32 v64, {f2u(1e-5):#x}\nv_fmac_f32 v64, {f2u(1/512):#x}, v36\nv_rsq_f32 v35, v64\nv_sqrt_f32 v36, v64")
    def tag_ld(self): return f"s_load_dword s{S_TAG}, s[{S_DBG}:{S_DBG+1}], 0"
    def tag_check(self):
        self.retry(f"s_cmp_eq_u32 s{S_TAG}, 0\ns_cselect_b64 vcc, -1, 0",
                   f"v_mov_b32 v{V_P0}, 0\nglobal_load_dword v{V_P0}, v{V_P0}, s[{S_DBG}:{S_DBG+1}] sc1\ns_waitcnt vmcnt(0)\nv_readfirstlane_b32 s{S_TAG}, v{V_P0}")
    def sum16l(self, b, m, dst=None):
        return [f"v_pk_add_f32 {vr(m,2)}, {vr(b,2)}, {vr(b+2,2)}",
                f"v_pk_add_f32 {vr(m+2,2)}, {vr(b+4,2)}, {vr(b+6,2)}",
                f"v_pk_add_f32 {vr(m,2)}, {vr(m,2)}, {vr(b+8,2)}",
                f"v_pk_add_f32 {vr(m+2,2)}, {vr(m+2,2)}, {vr(b+10,2)}",
                f"v_pk_add_f32 {vr(m,2)}, {vr(m,2)}, {vr(b+12,2)}",
                f"v_pk_add_f32 {vr(m+2,2)}, {vr(m+2,2)}, {vr(b+14,2)}",
                f"v_pk_add_f32 {vr(m,2)}, {vr(m,2)}, {vr(m+2,2)}",
                f"v_add_f32 v{m if dst is None else dst}, v{m}, v{m+1}"]
    def sum16(self, b, m, dst=None):
        for t in self.sum16l(b, m, dst): self.P(t)

    def m_phase1(self, isB, consts, hooks):
        P = self.P
        if isB:
            frags = [(0, 0), (0, 8192), (0, 16384)]
            units = [(f, rho, f == 2) for f in range(3) for rho in range(2)]
            nb = 1
        else:
            frags = [(0, 0), (1, 0), (0, 8192), (2, 0)]
            units = [(f, rho, False) for f in range(3) for rho in range(2)] + [(3, 0, False)]
            nb = 3
        nf = len(frags); nu = len(units)
        self.vm.append("xrow")
        self.stamp("i0")
        if not isB:
            P(f"""
            s_or_b32 s{S_T0}, s2, s{S_WAVE}
            s_cmp_lg_u32 s{S_T0}, 0
            s_cbranch_scc1 L_NOLEAD
            s_memrealtime s[{S_EX}:{S_EX+1}]
            v_mov_b32 v12, 0
            s_waitcnt lgkmcnt(0)
            s_or_b32 s{S_T0}, s{S_EX}, 1
            v_mov_b32 v13, s{S_T0}
            s_mov_b64 exec, 1
            global_store_dword v12, v13, s[{S_OUT+2}:{S_OUT+3}] sc1
            s_mov_b64 exec, -1
            L_NOLEAD:
            """)
        if isB and 'nor3' not in self.x:
            P(f"""
            s_and_b32 s{S_T0}, s{S_IDX}, 15
            s_lshl4_add_u32 s{S_T0}, s{S_R}, s{S_T0}
            s_lshl_b32 s{S_T0}, s{S_T0}, 10
            v_lshlrev_b32 v26, 16, v1
            s_cmp_eq_u32 s{S_RH}, 0
            s_cselect_b64 exec, 0xffffff, 0
            """)
            self.vmop("r3", f"buffer_load_dword v27, v26, {srd(S_W)}, s{S_T0} offen offset:384")
            P("s_mov_b64 exec, -1")
        self.late_consts()
        P(f"""
        s_mov_b32 s{S_RR}, s{S_KQ}
        s_mov_b32 s{S_G}, s{S_CH}
        v_bfe_u32 v23, v1, 1, 3
        v_xor_b32 v23, v23, v{V_H}
        v_lshlrev_b32 v23, 4, v23
        v_lshl_add_u32 v23, v{V_L31}, 7, v23
        s_add_u32 s{S_T0}, s{S_LX}, {slot(0)}
        v_add_u32 v{XA}, s{S_T0}, v23
        v_xor_b32 v{XA+1}, 32, v{XA}
        v_xor_b32 v{XA+2}, 64, v{XA}
        v_xor_b32 v{XA+3}, 0x60, v{XA}
        s_lshl1_add_u32 s{S_T0}, s{S_RB}, s{S_RR}
        s_lshr_b32 s{S_T1}, s{S_CG}, 2
        s_lshl1_add_u32 s{S_T0}, s{S_T0}, s{S_T1}
        s_lshl_b32 s{S_T0}, s{S_T0}, 10
        s_and_b32 s{S_T1}, s{S_CG}, 3
        s_lshl1_add_u32 s{S_T1}, s{S_T1}, s{S_G}
        s_lshl2_add_u32 s{S_T0}, s{S_T1}, s{S_T0}
        s_add_u32 s{S_FL}, s{S_T0}, {WS_FL + (FL_O if isB else 0)}
        """)
        for k in range(4): P(f"v_xor_b32 v{XA+4+k}, 0x1000, v{XA+k}")
        wb = 0x4000 + slot(0)
        if isB:
            self.tile_addr(WA, S_G, wb)
            P(f"""
            s_lshl_b32 s{S_T0}, s{S_RR}, 5
            v_xor_b32 v{WA}, s{S_T0}, v{WA}
            s_lshl_b32 s{S_T1}, s{S_G}, 7
            s_add_u32 s{S_T1}, s{S_T1}, {T_CS}
            s_lshl_b32 s{S_T0}, s{S_RR}, 6
            v_lshlrev_b32 v14, 2, v{V_L31}
            v_xor_b32 v14, s{S_T0}, v14
            v_add_u32 v14, s{S_T1}, v14
            """)
            cso = [(14, 64*f) for f in range(3)]
        else:
            P(f"s_and_b32 s{S_T3}, s{S_CG}, 1\ns_lshl_b32 s{S_T1}, s{S_G}, 2\ns_add_u32 s{S_T1}, s{S_T1}, s{S_T3}")
            P(f"s_lshl_b32 s{S_T2}, s{S_T1}, 7\ns_add_u32 s{S_T2}, s{S_T2}, {T_CS}\nv_lshlrev_b32 v13, 2, v{V_L31}\nv_add_u32 v14, s{S_T2}, v13")
            self.tile_addr(WA, S_T1, wb)
            P(f"s_add_u32 s{S_T1}, s{S_T1}, 1")
            self.tile_addr(WA + 1, S_T1, wb)
            P(f"s_add_u32 s{S_T1}, s{S_T3}, 3")
            self.tile_addr(WA + 2, S_T1, wb)
            P(f"s_lshl_b32 s{S_T2}, s{S_T1}, 7\ns_add_u32 s{S_T2}, s{S_T2}, {T_CS}\nv_add_u32 v13, s{S_T2}, v13")
            cso = [(14, 0), (14, 32), (14, 64), (13, 0)]
        consts()
        self.stamp("i1")
        self.warm(-2, isB)
        self.vmwait("xrow")
        self.stamp("xr")
        self.row_stats()
        P(f"s_lshl_b32 s{S_T0}, s{S_R}, 5\ns_add_u32 s{S_T0}, s{S_T0}, {T_ST}\nv_lshlrev_b32 v{V_P1}, 4, v{V_H}\nv_add_u32 v{V_P1}, s{S_T0}, v{V_P1}")
        self.warm(-4, isB)
        if isB: self.vmwait("clr")
        P(f"ds_write_b96 v{V_P1}, {vr(V_GR,3)}")
        if self.opt("r3c", 2) == 0: self.pf_w2(24, 25)
        self.lgall()
        self.warm(-3, isB)
        self.stamp("i2")
        P("s_setprio 2")
        P("s_barrier")
        self.stamp(1)
        def reads(t):
            b = t & 1
            X = [(f"x{rho}", f"ds_read_b128 {vr(XB[b]+4*rho,4)}, v{XA+4*rho+t}") for rho in range(2)]
            W = []
            for f, (bi, off) in enumerate(frags):
                o = off + t * 2048; ar = WA + bi; d = WBUF[b] + 4*f
                W.append([(f"w{f}", f"ds_read_b64_tr_b16 {vr(d,2)}, v{ar} offset:{o}"), (f"w{f}", f"ds_read_b64_tr_b16 {vr(d+2,2)}, v{ar} offset:{o+512}")])
            L = [X[0]] + W[0] + [X[1]]
            for w in W[1:]: L += w
            return [(f"{tg}_{b}", c) for tg, c in L]
        def spread(L, lo, hi, slots):
            n = hi - lo; p = 0
            for i in range(n):
                q = (len(L) - p + (n - i) - 1) // (n - i)
                slots[lo + i] += L[p:p+q]; p += q
        for tg, c in reads(0): self.lgop(tg, c)
        for c in range(8):
            for t in range(4):
                b = t & 1
                rs = [[] for _ in range(nu)]; vs = [[] for _ in range(nu)]
                last = (c == 7 and t == 3)
                if t < 3: spread(reads(t + 1), 0, nu - 2, rs)
                elif not last: spread(reads(0), 1, nu - 1, rs)
                else: rs[1] = [("cs", f"ds_read2_b32 {vr(CSR+2*f,2)}, v{a} offset0:{o} offset1:{o}") for f, (a, o) in enumerate(cso)]
                if c < 7:
                    d = (slot(c + 1) - slot(c)) & 0xffffffff
                    upd = lambda regs: [f"v_add_u32 v{r_}, {d:#x}, v{r_}" for r_ in regs]
                    if t == 1: spread(upd([XA, XA+4, XA+1, XA+5]), 1, nu, vs)
                    if t == 2: spread(upd([XA+2, XA+6]), 1, 3, vs); vs[nu-1] += upd([WA+k for k in range(nb)])
                    if t == 3: spread(upd([XA+3, XA+7]), 2, nu, vs)
                for i, (f, rho, sw) in enumerate(units):
                    if i == 0: self.lgwait(f"x0_{b}", f"x1_{b}", f"w0_{b}", f"w1_{b}")
                    if i == 4: self.lgwait(f"w2_{b}", f"w3_{b}")
                    x = vr(XB[b] + 4*rho, 4); w = vr(WBUF[b] + 4*f, 4); acc = vr(ACC + 16*i, 16)
                    aa, bb = (x, w) if sw else (w, x)
                    P(f"{MF} {acc}, {aa}, {bb}, {'0' if (c == 0 and t == 0) else acc}")
                    if t == 3 and i == 1:
                        self.stamp(f"a{c}")
                        self.lgall(); P("s_barrier")
                        self.stamp(f"b{c}")
                    for tg, code in rs[i]: self.lgop(tg, code)
                    for code in hooks.get((c, t, i), []): code()
                    for v in vs[i]: P(v)
                if t == 3: self.stamp(f"c{c}")
        self.lgall()
        def corr(i):
            f, rho, sw = units[i]
            acc = vr(ACC + 16*i, 16); x = vr(NM[rho], 4); w = vr(CSR + 2*f, 4)
            aa, bb = (x, w) if sw else (w, x)
            return f"{MF} {acc}, {aa}, {bb}, {acc}"
        self.stamp(2)
        return corr

    def m_hooks(self, nf):
        P = self.P
        h = {}
        h[(2, 3, 2)] = [lambda: P(self.tag_ld())]
        h[(4, 0, 4)] = [self.tag_check]
        def graddr():
            P(f"s_waitcnt vmcnt(0)\ns_lshl_b32 s{S_T0}, s{S_RB}, 11\ns_lshl_b32 s{S_T1}, s{S_R}, 9\ns_add_u32 s{S_GR}, s{S_T0}, s{S_T1}\ns_add_u32 s{S_GR}, s{S_GR}, {WS_GR}\ns_xor_b32 s{S_OD}, s{S_GR}, 512")
            P(f"v_lshlrev_b32 v{V_P0}, 4, v{V_L31}\ns_add_u32 s{S_T1}, s{S_T1}, {T_GR}\nv_add_u32 v26, s{S_T1}, v{V_P0}\nv_xor_b32 v27, 0x200, v26")
        h[(5, 0, 4)] = [graddr]
        h[(6, 3, 5)] = [lambda: (self.lgop("gr", f"ds_read_b128 {vr(V_GR,4)}, v26"), self.lgop("gr", f"ds_read_b128 {vr(V_GR1,4)}, v27"))]
        ld = [f"buffer_load_dwordx4 {vr(V_GR,4)}, v{V_P0}, {srd(S_WS)}, s{S_GR} offen sc1",
              f"buffer_load_dwordx4 {vr(V_GR1,4)}, v{V_P0}, {srd(S_WS)}, s{S_OD} offen sc1"]
        def grcheck():
            self.stamp("g0"); self.lgwait("gr"); self.stamp("g1")
            self.retry(f"v_cmp_ne_u32 vcc, s{S_TAG}, v{V_GR+3}\nv_cmp_ne_u32 s[{S_EX}:{S_EX+1}], s{S_TAG}, v{V_GR1+3}\ns_or_b64 vcc, vcc, s[{S_EX}:{S_EX+1}]", "\n".join(ld),
                       post=f"ds_write_b128 v26, {vr(V_GR,4)}\nds_write_b128 v27, {vr(V_GR1,4)}\ns_waitcnt lgkmcnt(0)")
        h[(7, 0, 5)] = [grcheck, lambda: self.stamp("g2")]
        h[(7, 2, 0)] = [lambda: self.stamp("g3")]
        for rho, g in ((0, V_GR), (1, V_GR1)):
            n = NM[rho]
            h[(7, 1, 2*rho)] = [lambda n=n, g=g: P(f"v_cvt_pk_bf16_f32 v{n}, -v{g}, -v{g}\nv_mov_b32 v{n+2}, 0\nv_lshlrev_b32 v{V_P1}, 16, v{n}")]
            h[(7, 1, 2*rho+1)] = [lambda n=n, g=g: P(f"v_sub_f32 v{V_P1}, -v{g}, v{V_P1}\nv_mov_b32 v{n+3}, 0\nv_cvt_pk_bf16_f32 v{n+1}, v{V_P1}, v{V_P1}")]
        h[(7, 1, 4)] = [lambda: P(f"v_mov_b32 v{CSR+2*nf}, 0\nv_mov_b32 v{CSR+2*nf+1}, 0\nv_lshlrev_b32 v{V_P0}, 7, v1")]
        return h

    def dma_p1(self, c, isB):
        pitch = 3072 if isB else 3584
        offs = [0, 1024, 2048] if isB else [0, 128, 256, 384]
        xo, wo = (S_XOFF, S_WOFF) if c < 4 else (S_XOFF2, S_WOFF2)
        L = []
        for i in range(4):
            pre = f"s_add_u32 s{S_KX}, s{xo}, {c*128 + (i>>1)*16384}\n" if i % 2 == 0 else ""
            L.append((f"c{c}", f"s_add_u32 m0, s{S_LX}, {slot(c) + i*1024}\n" + pre + f"buffer_load_dwordx4 v{2+(i&1)}, {srd(S_X)}, s{S_KX} offen lds"))
        for u, uo in enumerate(offs):
            for e in range(2):
                L.append((f"c{c}", f"s_add_u32 m0, s{S_LW}, {slot(c) + u*8192 + e*1024}\ns_add_u32 s{S_KW}, s{wo}, {(c*64 + 8*e)*pitch + uo}\nbuffer_load_dwordx4 v4, {srd(S_W)}, s{S_KW} offen lds"))
        return L
    def dma_w2(self, js):
        return [(f"h{j//12+1}", f"s_add_u32 m0, s{S_LB}, {j*4096}\ns_add_u32 s{S_KW}, s{S_BOFF}, {w2rows(j)*K}\nbuffer_load_dwordx4 v5, {srd(S_W2)}, s{S_KW} offen lds") for j in js]
    def dma_wo(self, js):
        return [("wo", f"s_add_u32 m0, s{S_LB}, {T_WOL + j*4096 if j < 8 else (j-8)*4096}\ns_add_u32 s{S_KW}, s{S_BOFFO}, {j*32*K}\nbuffer_load_dwordx4 v5, {srd(S_WO)}, s{S_KW} offen lds") for j in js]
    def trd(self, d, a, o):
        return [f"ds_read_b64_tr_b16 {vr(d,2)}, v{a} offset:{o}", f"ds_read_b64_tr_b16 {vr(d+2,2)}, v{a} offset:{o+512}"]
    def b_read(self, steps, a):
        P = self.P
        for n, s in enumerate(steps):
            if n >= 3: P("s_waitcnt lgkmcnt(8)")
            for ct in range(2): self.emit(self.trd(128 + 8*s + 4*ct, a + ct, s * 2048))
    def cnt_add(self, off, va, vt):
        self.P(f"v_mov_b32 v{vt}, 1\ns_mov_b64 exec, 1")
        self.lgop("cnt", f"ds_add_u32 v{va}, v{vt} offset:{off}")
        self.P("s_mov_b64 exec, -1")
    def cnt_check(self, off, va, vd, n=4):
        self.retry(f"v_cmp_gt_u32 vcc, {n}, v{vd}", f"ds_read_b32 v{vd}, v{va} offset:{off}", wait="lgkmcnt(0)")

    def tissue(self, L, name="cap"):
        cap = self.opt(name, {"cap": 16, "cap1": 0}[name])
        for k, it in enumerate(L):
            if cap: self.P(f"s_waitcnt vmcnt({cap - 1})")
            self.vmop(*it)
    def mark(self, t, sel=False):
        if sel and 'wall' in self.x: return
        self.P.label(self.lab(f"WM{t}"))
    def wlist(self):
        d = "T-4.S-1"
        for a in self.x:
            if a.startswith("wl="): d = a[3:]
        return [(int(t[1:]), t[0]) for t in d.split(".")]
    def warm(self, where, isB):
        P = self.P
        if 'nowarm' in self.x: return
        for k, (pos, kind) in enumerate(self.wlist()):
            if where == pos:
                t = "AB"[isB]; u = t if kind == "T" else "S"
                self.stamp(f"wa{k}")
                P(f"s_mov_b64 exec, 0\ns_mov_b64 vcc, {int(isB)}")
                for r in range(3): P(f"s_cmp_eq_u32 s{S_R}, {r}\ns_cbranch_scc1 SEG_{u}{k}_{r}")
                P(f"s_branch SEG_{u}{k}_3\nRET{k}_{t}:\ns_mov_b64 exec, -1")
                self.stamp(f"wb{k}")
    def h_phase1(self, isB):
        P = self.P
        WF = 48; CS = 80; CG = 84
        self.vm.append("c0")
        self.stamp("i0")
        self.pf_bases()
        if 'nopf' not in self.x:
            pm = (0x777777777777 if isB else 0xffffffffffff) & ((1 << (16 * self.opt("npf", 3))) - 1)
            P(f"""
            v_lshrrev_b32 v22, 4, v1
            v_bfe_u32 v23, v1, 2, 2
            v_lshl_add_u32 v22, v22, 6, v23
            v_add_u32 v22, 64, v22
            v_and_b32 v23, 3, v1
            v_lshlrev_b32 v23, {10 if isB else 7}, v23
            v_mad_u32_u24 v26, v22, s{S_PITCH}, v23
            s_mov_b32 exec_lo, {pm & 0xffffffff:#x}
            s_mov_b32 exec_hi, {pm >> 32:#x}
            """)
            self.vmop("pf", f"buffer_load_dword v27, v26, {srd(S_W)}, s{S_SW} offen")
            P("s_mov_b64 exec, -1")

        self.late_consts()
        P(f"""
        s_cmp_eq_u32 s{S_CS}, 0
        s_cselect_b32 s{S_T0}, {slot(0)}, {slot(2)}
        s_lshl_b32 s{S_T1}, s{S_R}, 13
        s_add_u32 s{S_T0}, s{S_T0}, s{S_T1}
        s_add_u32 s{S_T0}, s{S_T0}, 0x4000
        v_add_u32 v12, s{S_T0}, v7
        v_xor_b32 v13, 64, v12
        s_lshl3_add_u32 s{S_CSO}, s{S_TYPE}, s{S_CG}
        s_lshl2_add_u32 s{S_CSO}, s{S_CSO}, s{S_R}
        s_lshl_b32 s{S_CSO}, s{S_CSO}, 12
        s_add_u32 s{S_CSO}, s{S_CSO}, {WS_CS}
        s_lshl1_add_u32 s{S_PP}, s{S_GRP}, s{S_CS}
        s_lshl_b32 s{S_PP}, s{S_PP}, 9
        s_add_u32 s{S_PP}, s{S_PP}, s{S_CSO}
        v_lshlrev_b32 v14, 3, v1
        s_lshl_b32 s{S_T0}, s{S_R}, 8
        s_add_u32 s{S_T0}, s{S_T0}, {T_CS}
        v_lshlrev_b32 v15, 2, v1
        v_add_u32 v15, s{S_T0}, v15
        s_lshl_b32 s{S_T2}, s{S_R}, 13
        s_lshl_b32 s{S_T0}, s{S_C}, 7
        s_add_u32 s{S_BOFFO}, s{S_T2}, s{S_T0}
        s_mul_i32 s{S_T0}, s{S_RH}, {896*K}
        s_add_u32 s{S_BOFF}, s{S_BOFFO}, s{S_T0}
        s_lshl_b32 s{S_LB}, s{S_R}, 10
        v_mov_b32 v{CS}, 0
        v_mov_b32 v{CS+1}, 0
        v_mov_b32 v{CS+2}, 0
        v_mov_b32 v{CS+3}, 0
        v_mov_b32 v22, {T_CNT}
        ds_write_b128 v22, {vr(CS,4)}
        ds_write_b128 v22, {vr(CS,4)} offset:16
        ds_write_b128 v22, {vr(CS,4)} offset:32
        s_lshl_b32 s{S_T0}, s{S_R}, 9
        s_add_u32 s{S_T0}, s{S_T0}, {T_ZI}
        v_add_u32 v22, s{S_T0}, v14
        ds_write_b64 v22, {vr(CS,2)}
        s_mov_b32 s{S_FL}, 0x3f003f00
        """)
        hold = self.opt("hold", 4)
        items = [self.dma_p1(c, isB) for c in range(1, 8)] + [self.dma_w2(range(0, 12)), self.dma_w2(range(12, 24))]
        n0 = self.opt("n0", 4)
        self.issue(items[0][:n0])
        self.stamp("i1")
        self.warm(-1, isB)
        self.vmwait("c0", extra=" lgkmcnt(0)"); self.stamp("i2"); P("s_barrier")
        self.stamp(1)
        P(f"s_setprio {self.opt('hp', 0)}")
        def csum(p):
            l = self.lab("NOCS")
            P(f"s_cmp_lg_u32 s{S_CS}, {p >> 1}\ns_cbranch_scc1 {l}\ns_waitcnt lgkmcnt(0)")
            for hf in range(2):
                for t in range(2):
                    for i in range(2):
                        d = WF + 16*hf + 8*t + 4*i; o = (2*hf + t) * 2048 + (p & 1) * SLOT
                        if (hf, t, i) == (1, 1, 1): P("s_waitcnt lgkmcnt(12)")
                        P(f"ds_read_b64_tr_b16 {vr(d,2)}, v{12+i} offset:{o}\nds_read_b64_tr_b16 {vr(d+2,2)}, v{12+i} offset:{o+512}")
            for hf in range(2):
                P(f"s_waitcnt lgkmcnt({8 - 8*hf})")
                for t in range(2):
                    for k in range(4):
                        for i in range(2):
                            P(f"v_dot2c_f32_bf16 v{CS+i}, s{S_FL}, v{WF + 16*hf + 8*t + 4*i + k}")
            P(f"{l}:")
        P(self.tag_ld())
        self.tissue(items[0][n0:], "cap1")
        if isB:
            P(f"""
            s_and_b32 s{S_T2}, s{S_R}, 1
            s_lshl_b32 s{S_T0}, s{S_CG}, 11
            s_lshl_b32 s{S_T1}, s{S_T2}, 10
            s_add_u32 s{S_T0}, s{S_T0}, s{S_T1}
            s_add_u32 s{S_EX}, s{S_PHI}, s{S_T0}
            s_addc_u32 s{S_EX+1}, s{S_PHI+1}, 0
            s_add_u32 m0, s{S_T1}, {T_PHI}
            """)
            self.vmop("phi", f"global_load_lds_dwordx4 v6, s[{S_EX}:{S_EX+1}]")
        cut = lambda L: min(len(L), self.opt("fwd", 8))
        self.tissue(items[1][:cut(items[1])], "cap1")
        csum(0)
        gl = [f"buffer_load_dwordx2 {vr(CG+2*j,2)}, v14, {srd(S_WS)}, s{S_CSO} offen offset:{j*512} sc1" for j in range(4)]
        gc = "\n".join([f"v_xor_b32 v{V_P1}, s{S_TAG}, v{CG+1}"] + [f"v_xor_b32 v{V_P0}, s{S_TAG}, v{CG+2*j+1}\nv_or_b32 v{V_P1}, v{V_P1}, v{V_P0}" for j in range(1, 4)])
        gc += f"\nv_cmp_ne_u32 vcc, 0, v{V_P1}"
        for c in range(7):
            self.stamp(f"w{c}")
            self.vmwait(f"c{c+1}", *(["grd", "cg"] if c == 6 else []))
            self.stamp(f"a{c}")
            P("s_barrier")
            self.stamp(f"b{c}")
            if c == 0:
                P(f"""
                s_lshl_b32 s{S_T0}, s{S_R}, 5
                s_add_u32 s{S_T1}, s{S_T0}, {T_ST}
                v_and_b32 v22, 16, v6
                v_add_u32 v23, s{S_T1}, v22
                ds_read_b96 {vr(V_GR,3)}, v23
                s_lshl3_add_u32 s{S_T1}, s{S_TYPE}, s{S_CG}
                s_lshl4_add_u32 s{S_T1}, s{S_RB}, s{S_T1}
                s_lshl_b32 s{S_T1}, s{S_T1}, 7
                s_add_u32 s{S_T0}, s{S_T0}, s{S_T1}
                s_add_u32 s{S_GR}, s{S_T0}, {WS_GR}
                """)
            if c == self.opt("r3c", 2) - 1: self.pf_w2(24, 25)
            self.pf_xcd(c + 1, 24)
            if c + 1 in (self.opt("pc", 99), self.opt("pc2", 99)):
                l = self.lab("PC")
                P(f"""
                s_getpc_b64 s[{S_EX}:{S_EX+1}]
                {l}:
                s_lshl2_add_u32 s{S_T0}, s{S_IDX}, s{S_R}
                s_lshl_b32 s{S_T0}, s{S_T0}, 9
                s_min_u32 s{S_T0}, s{S_T0}, CODE_BYTES
                s_sub_u32 s{S_EX}, s{S_EX}, {l} - {KNAME}
                s_subb_u32 s{S_EX+1}, s{S_EX+1}, 0
                v_lshlrev_b32 v24, 7, v1
                v_add_u32 v24, s{S_T0}, v24
                s_mov_b64 exec, 15
                """)
                self.vmop("r3", f"global_load_dword v27, v24, s[{S_EX}:{S_EX+1}]")
                P("s_mov_b64 exec, -1")
            if c == 5:
                P(f"s_lshl2_add_u32 s{S_T0}, s{S_RB}, s{S_R}\ns_lshl_b32 s{S_T0}, s{S_T0}, 9\ns_add_u32 s{S_T0}, s{S_T0}, {WS_GR}\ns_lshl_b32 s{S_T1}, s{S_R}, 9\ns_add_u32 m0, s{S_T1}, {T_GR}\ns_mov_b32 exec_hi, 0")
                self.vmop("grd", f"buffer_load_dwordx4 v6, {srd(S_WS)}, s{S_T0} offen sc1 lds")
                P("s_mov_b32 exec_hi, -1")
                for l in gl: self.vmop("cg", l)
            if c == self.opt("pf2", 0) - 1:
                P(f"s_sub_u32 s{S_T0}, s{S_WOFF2}, s{S_WOFF}\ns_add_u32 s{S_T0}, s{S_T0}, s{S_SW}\ns_add_u32 s{S_T0}, s{S_T0}, {192*(3072 if isB else 3584)}\ns_mov_b32 exec_lo, {0x77777777 if isB else -1:#x}\ns_mov_b32 exec_hi, 0")
                self.vmop("pf", f"buffer_load_dword v27, v26, {srd(S_W)}, s{S_T0} offen")
                P("s_mov_b64 exec, -1")
            prev, new = items[c + 1], items[c + 2]
            if c == 6:
                self.retry(gc, "\n".join(gl))
                P(f"v_add_f32 v{CG}, v{CG}, v{CG+2}\nv_add_f32 v{CG+4}, v{CG+4}, v{CG+6}\nv_add_f32 v{CG}, v{CG}, v{CG+4}")
                P(f"v_cvt_pk_bf16_f32 v{CG+1}, v{CG}, v{CG}\nv_lshlrev_b32 v{CG+1}, 16, v{CG+1}\nv_sub_f32 v{CG+1}, v{CG}, v{CG+1}\nv_cvt_pk_bf16_f32 v{CG}, v{CG}, v{CG+1}")
                P(f"ds_write_b32 v15, v{CG}")
            self.tissue(prev[cut(prev):], "cap1")
            if c == 0:
                P("s_waitcnt lgkmcnt(0)")
                self.tag_check()
                P(f"v_mov_b32 v37, s{S_TAG}\ns_mov_b64 exec, 3")
                self.vmop("grst", f"buffer_store_dwordx4 {vr(V_GR,4)}, v22, {srd(S_WS)}, s{S_GR} offen sc1")
                P("s_mov_b64 exec, -1")
            if c == 6:
                h7 = self.opt("h7", 6)
                self.tissue(new[:h7], "cap1")
                self.lgall()
            else:
                self.tissue(new[:cut(new)], "cap1")
            if c < 3: csum(c + 1)
            self.warm(c + 1, isB)
            if c == 2:
                P(f"v_permlane32_swap_b32 v{CS}, v{CS+1}\ns_cmp_lt_u32 s{S_CS}, 2\ns_cselect_b64 exec, -1, 0\nv_add_f32 v36, v{CS}, v{CS+1}")
                self.vmop("csst", f"buffer_store_dwordx2 v[36:37], v14, {srd(S_WS)}, s{S_PP} offen sc1")
                P("s_mov_b64 exec, -1")
            if c == 3: self.ph2_scalars(True)
        self.stamp("a7")
    def hflag(self, st):
        return f"s_buffer_load_dwordx8 s[{S_F}:{S_F+7}], {srd(S_WS)}, s{S_PF} offset:{32*st} glc"

    def ph2_scalars(self, isH):
        P = self.P
        if isH:
            P(f"""
            s_lshl1_add_u32 s{S_T0}, s{S_RB2}, s{S_KQ}
            s_lshl1_add_u32 s{S_T0}, s{S_T0}, s{S_RH}
            s_lshl3_add_u32 s{S_T0}, s{S_T0}, s{S_C}
            s_lshl_b32 s{S_T0}, s{S_T0}, 7
            s_add_u32 s{S_PF}, s{S_T0}, {WS_FL}
            s_lshl2_add_u32 s{S_T0}, s{S_RB2}, s{S_R}
            s_mul_i32 s{S_T0}, s{S_T0}, 144
            s_mul_i32 s{S_T1}, s{S_RH}, 56
            s_add_u32 s{S_T0}, s{S_T0}, s{S_T1}
            s_lshl_b32 s{S_AOFF}, s{S_T0}, 10
            s_lshl3_add_u32 s{S_T0}, s{S_RB2}, s{S_C}
            s_lshl2_add_u32 s{S_T0}, s{S_T0}, s{S_R}
            s_mul_i32 s{S_T0}, s{S_T0}, {6*K}
            s_add_u32 s{S_AF}, s{S_T0}, {WS_GX}
            s_sub_u32 s{S_T0}, s{S_RH}, s{S_KQ}
            s_mul_i32 s{S_T0}, s{S_T0}, {12*K}
            s_xor_b32 s{S_LA}, s{S_RH}, s{S_KQ}
            s_mul_i32 s{S_T1}, s{S_LA}, {3*K}
            s_add_u32 s{S_T0}, s{S_T0}, s{S_T1}
            s_add_u32 s{S_AO}, s{S_AF}, s{S_T0}
            s_lshl1_add_u32 s{S_T0}, s{S_CH}, s{S_KQ}
            s_mul_i32 s{S_T1}, s{S_CG}, {16*KVP_SZ}
            s_lshl_b32 s{S_T2}, s{S_T0}, 10
            s_add_u32 s{S_T1}, s{S_T1}, s{S_T2}
            s_add_u32 s{M_PO}, s{S_T1}, {WS_KVP}
            s_lshl2_add_u32 s{S_T0}, s{S_CG}, s{S_T0}
            s_lshl4_add_u32 s{S_T0}, s{S_T0}, s{S_RB}
            s_lshl_b32 s{S_T0}, s{S_T0}, 7
            s_add_u32 s{M_KFL}, s{S_T0}, {WS_FL + FL_KV}
            s_mov_b32 s{M_PEND}, 0xff
            s_mov_b32 s{M_RT}, 0
            s_mov_b32 s{M_RDY}, 0
            v_xor_b32 v8, 64, v7
            v_add_u32 v9, 0x10000, v7
            v_add_u32 v10, 0x10000, v8
            v_mov_b32 v11, {T_CNT}
            """)
            if 'notouch' not in self.x:
                P(f"""
                s_lshl1_add_u32 s{S_T0}, s{S_RB2}, s{S_RH}
                s_lshl1_add_u32 s{S_T0}, s{S_T0}, s{S_KQ}
                s_lshl3_add_u32 s{S_T0}, s{S_T0}, s{S_C}
                s_lshl_b32 s{S_T0}, s{S_T0}, 7
                s_add_u32 s{S_T0}, s{S_T0}, {WS_FL + FL_O}
                s_lshl_b32 s{S_T1}, s{S_CH}, 6
                s_add_u32 s{S_T1}, s{S_T1}, s{S_PF}
                s_buffer_load_dword s7, {srd(S_WS)}, s{S_T1} glc
                s_buffer_load_dword s7, {srd(S_WS)}, s{M_KFL} glc
                s_buffer_load_dword s7, {srd(S_WS)}, s{S_T0} glc
                s_buffer_load_dword s7, {srd(S_WS)}, s{S_AO} offset:{3*K - 4} glc
                """)
        else:
            P(f"""
            s_lshl1_add_u32 s{S_T0}, s{S_RB2}, s{S_RH}
            s_lshl1_add_u32 s{S_T1}, s{S_T0}, s{S_KQ}
            s_lshl3_add_u32 s{S_T1}, s{S_T1}, s{S_C}
            s_lshl_b32 s{S_T1}, s{S_T1}, 7
            s_add_u32 s{S_PF}, s{S_T1}, {WS_FL + FL_O}
            s_lshl1_add_u32 s{S_T0}, s{S_T0}, s{S_CH}
            s_mul_i32 s{S_T1}, s{S_T0}, 144
            s_lshl4_add_u32 s{S_T1}, s{S_KQ}, s{S_T1}
            s_add_u32 s{S_T1}, s{S_T1}, 112
            s_lshl_b32 s{S_AO}, s{S_T1}, 10
            s_lshl_b32 s{S_T0}, s{S_T0}, 15
            s_lshl1_add_u32 s{S_T1}, s{S_C}, s{S_KQ}
            s_lshl_b32 s{S_T1}, s{S_T1}, 6
            s_add_u32 s{S_OUTO}, s{S_T0}, s{S_T1}
            """)

    def MA(self):
        P = self.P
        hooks = self.m_hooks(4)
        def addr():
            P(f"""
            s_lshl_b32 s{S_T0}, s{S_RB}, 2
            s_add_u32 s{S_T0}, s{S_T0}, s{S_R}
            s_xor_b32 s{S_T2}, s{S_T0}, 1
            s_mul_i32 s{S_T0}, s{S_T0}, 144
            s_mul_i32 s{S_T2}, s{S_T2}, 144
            s_lshr_b32 s{S_T1}, s{S_CG}, 2
            s_mul_i32 s{S_T1}, s{S_T1}, 56
            s_add_u32 s{S_T0}, s{S_T0}, s{S_T1}
            s_add_u32 s{S_T2}, s{S_T2}, s{S_T1}
            s_and_b32 s{S_T1}, s{S_CG}, 3
            s_lshl_b32 s{S_T1}, s{S_T1}, 1
            s_add_u32 s{S_KW}, s{S_T0}, s{S_T1}
            s_add_u32 s{S_KW}, s{S_KW}, 48
            s_lshl_b32 s{S_KW}, s{S_KW}, 10
            s_add_u32 s{S_T1}, s{S_T1}, s{S_G}
            s_lshl_b32 s{S_T1}, s{S_T1}, 1
            s_add_u32 s{S_T0}, s{S_T0}, s{S_T1}
            s_add_u32 s{S_T2}, s{S_T2}, s{S_T1}
            s_lshl_b32 s{S_AOFF}, s{S_T0}, 10
            s_lshl_b32 s{S_KX}, s{S_T2}, 10
            """)
            self.ph2_scalars(False)
        hooks[(7, 2, 1)] = [lambda: P(f"v_mul_f32 v{V_GR}, {f2u(-LOG2E):#x}, v{V_GR+1}\nv_mul_f32 v{V_GR1}, {f2u(-LOG2E):#x}, v{V_GR1+1}")]
        corr = self.m_phase1(False, addr, hooks)
        P(corr(0))
        D = self.opt("pd", 2)
        for i in range(7):
            f, rho = (i >> 1, i & 1)
            if i == self.opt("wau", 0 if 'wall' in self.x else 4): self.mark("A")
            g = (V_GR, V_GR1)[rho]
            acc = ACC + 16*i; E = 208; O = 224 + 8*(i & 1)
            for j in range(0, 16, 2): P(f"v_pk_mul_f32 {vr(E+j,2)}, {vr(acc+j,2)}, {vr(g,2)} op_sel_hi:[1,0]")
            for j in range(16):
                if i == 0 and j in (0, 4, 8): P(corr(1 + j // 4))
                P(f"v_exp_f32 v{E+j}, v{E+j}")
            for j in range(0, 16, 2): P(f"v_pk_fma_f32 {vr(E+j,2)}, {vr(E+j,2)}, {vr(g+2,2)}, {vr(g+2,2)} op_sel_hi:[1,0,0]")
            for j in range(16):
                if i == 0 and j in (0, 4, 8): P(corr(4 + j // 4))
                P(f"v_rcp_f32 v{E+j}, v{E+j}")
            for j in range(0, 16, 2): P(f"v_pk_mul_f32 {vr(E+j,2)}, {vr(acc+j,2)}, {vr(E+j,2)}")
            for j in range(8): P(f"v_cvt_pk_bf16_f32 v{O+j}, v{E+2*j}, v{E+2*j+1}")
            so = S_KW if f == 3 else (S_AOFF, S_KX)[rho]
            for a in range(2):
                if 'nost' in self.x: P("s_mov_b64 exec, 0")
                self.vmop(f"h{f}", f"buffer_store_dwordx4 {vr(O+4*a,4)}, v6, {srd(S_WS)}, s{so} offen offset:{a*1024} {'' if 'plain' in self.x else 'sc1'}")
                if 'nost' in self.x: P("s_mov_b64 exec, -1")
            if f < 2: P(f"s_add_u32 s{so}, s{so}, 16384")
            self.stamp(f"l{i}")
            for st in range(2):
                if i == min(6, 2*st + 1 + D):
                    self.vmwait(f"h{st}"); self.flag(37, S_FL, 32*st); self.stamp(f"f{st}")
        self.stamp(3)
        self.vmwait("h2"); self.flag(37, S_FL, 64); self.stamp("f2")
        self.wo_setup()
        self.b_read(range(12), 8)
        P(f"s_add_u32 s{S_FL}, s{S_FL}, 96\ns_waitcnt vmcnt(0) lgkmcnt(0)")
        self.b_read(range(12, 16), 8)
        P("s_branch L_PH2M")
    def HA(self):
        self.h_phase1(False)
        self.P("s_branch L_PH2H")
        if 'nowarm' not in self.x:
            for k, (pos, kind) in enumerate(self.wlist()):
                if kind == "S": self.P(f"RET{k}_S:\ns_cbranch_vccnz RET{k}_B\ns_branch RET{k}_A")
    def HB(self):
        self.P.label("L_HB")
        self.h_phase1(True)

    def sm(self, Pr, out, m, c):
        d = {}
        d['max'] = [f"v_max3_f32 v{m}, v{Pr}, v{Pr+1}, v{Pr+2}", f"v_max3_f32 v{m+1}, v{Pr+3}, v{Pr+4}, v{Pr+5}",
                    f"v_max3_f32 v{m+2}, v{Pr+6}, v{Pr+7}, v{Pr+8}", f"v_max3_f32 v{m}, v{m}, v{Pr+9}, v{Pr+10}",
                    f"v_max3_f32 v{m+1}, v{m+1}, v{Pr+11}, v{Pr+12}", f"v_max3_f32 v{m+2}, v{m+2}, v{Pr+13}, v{Pr+14}",
                    f"v_max3_f32 v{m}, v{m}, v{m+1}, v{Pr+15}", f"v_max_f32 v{m}, v{m}, v{m+2}", f"v_mul_f32 v{m}, -v{c}, v{m}"]
        d['fma'] = [f"v_pk_fma_f32 {vr(Pr+j,2)}, {vr(Pr+j,2)}, {vr(c,2)}, {vr(m,2)} op_sel_hi:[1,0,0]" for j in range(0, 16, 2)]
        d['exp'] = [f"v_exp_f32 v{Pr+j}, v{Pr+j}" for j in range(16)]
        d['sum'] = self.sum16l(Pr, m) + [f"v_rcp_f32 v{m}, v{m}"]
        d['mul'] = [f"v_pk_mul_f32 {vr(Pr+j,2)}, {vr(Pr+j,2)}, {vr(m,2)} op_sel_hi:[1,0]" for j in range(0, 16, 2)]
        d['cvt'] = [f"v_cvt_pk_bf16_f32 v{out+j}, v{Pr+2*j}, v{Pr+2*j+1}" for j in range(8)]
        return d
    def emit(self, *lists):
        for L in lists:
            if isinstance(L, str): L = [L]
            for t in L: self.P(t)

    def MB(self):
        P = self.P; E = self.emit
        WP, SEL = 248, 72
        RR = [176, 192]
        AQ, AK, AV = 80, 112, 144
        GRS = (V_GR, V_GR1)
        hooks = self.m_hooks(3)
        def consts():
            P(f"""
            s_lshl_b32 s{S_T0}, s{S_CG}, 4
            s_add_u32 s{S_T0}, s{S_T0}, s{S_RB}
            s_mul_i32 s{S_T0}, s{S_T0}, {KVP_SZ}
            s_add_u32 s{S_T0}, s{S_T0}, {WS_KVP}
            s_xor_b32 s{S_T2}, s{S_RR}, 1
            s_lshl_b32 s{S_T1}, s{S_G}, 1
            s_add_u32 s{S_T1}, s{S_T1}, s{S_T2}
            s_lshl_b32 s{S_T2}, s{S_T1}, 10
            s_add_u32 s{S_KW}, s{S_T0}, s{S_T2}
            s_lshl_b32 s{S_T2}, s{S_T1}, 7
            s_add_u32 s{M_Z}, s{S_T0}, s{S_T2}
            s_add_u32 s{M_Z}, s{M_Z}, 4096
            s_lshl2_add_u32 s{S_PP}, s{S_CG}, s{S_T1}
            s_lshl_b32 s{S_PP}, s{S_PP}, 11
            s_lshl2_add_u32 s{S_PP}, s{S_RB}, s{S_PP}
            s_add_u32 s{S_PP}, s{S_PP}, {WS_FL + FL_KV}
            v_and_b32 v22, 0x13, v1
            v_and_b32 v25, 4, v1
            v_lshl_or_b32 v22, v25, 1, v22
            v_and_b32 v25, 8, v1
            v_lshrrev_b32 v25, 1, v25
            v_or_b32 v22, v22, v25
            v_lshlrev_b32 v3, 2, v22
            v_mov_b32 v56, -1
            v_mov_b32 v57, -1
            v_mov_b32 v58, -1
            v_mov_b32 v59, -1
            """)
            self.vmop("clr", f"buffer_store_dwordx4 v[56:59], v6, {srd(S_WS)}, s{S_KW} offen sc1")
            self.vmop("clr", f"buffer_store_dword v56, v3, {srd(S_WS)}, s{M_Z} offen sc1")
            P(f"""
            v_lshlrev_b32 v23, 4, v{V_H}
            v_sub_u32 v22, v22, v23
            v_ashrrev_i32 v32, 1, v22
            v_and_b32 v33, 1, v22
            v_lshlrev_b32 v33, 4, v33
            v_mov_b32 v22, 0x3f80
            v_lshlrev_b32 v33, v33, v22
            v_bfe_u32 v16, v1, 2, 2
            v_lshl_add_u32 v16, v{V_H}, 3, v16
            v_lshlrev_b32 v16, 5, v16
            v_bfe_u32 v22, v1, 4, 1
            v_lshl_add_u32 v16, v22, 4, v16
            v_bfe_u32 v22, v1, 1, 1
            v_lshl_add_u32 v16, v22, 3, v16
            s_lshl_b32 s{S_T0}, s{S_G}, 10
            s_lshl_b32 s{S_T1}, s{S_RR}, 9
            s_add_u32 s{S_T0}, s{S_T0}, s{S_T1}
            s_add_u32 s{S_T0}, s{S_T0}, {T_PHI}
            v_add_u32 v16, s{S_T0}, v16
            v_xor_b32 v15, 0x200, v16
            s_lshl_b32 s{S_T0}, s{S_R}, 9
            s_add_u32 s{S_T1}, s{S_T0}, {T_GR}
            v_lshlrev_b32 v17, 6, v{V_H}
            v_add_u32 v17, s{S_T1}, v17
            v_xor_b32 v18, 0x200, v17
            s_add_u32 s{S_T1}, s{S_T0}, {T_ZI}
            v_lshlrev_b32 v2, 3, v1
            v_add_u32 v2, s{S_T1}, v2
            v_bfe_u32 v19, v1, 2, 1
            v_mul_u32_u24 v19, 0x8000, v19
            v_lshl_or_b32 v19, v19, 16, v19
            v_and_b32 v11, 15, v1
            v_add_u32 v11, v11, v23
            v_lshlrev_b32 v11, 4, v11
            s_lshl_b32 s{S_T0}, s{S_R}, 11
            s_add_u32 s{S_T0}, s{S_T0}, {T_KVS}
            v_and_b32 v5, 0x2f0, v6
            v_add_u32 v5, s{S_T0}, v5
            v_min_u32 v12, 16, v{V_L31}
            v_mul_u32_u24 v12, {KVR}, v12
            v_lshl_add_u32 v12, v{V_H}, 5, v12
            v_add_u32 v13, s{S_T0}, v12
            v_xor_b32 v12, 0x1000, v13
            s_xor_b32 s{S_T0}, s{S_T0}, 0x1000
            v_add_u32 v4, s{S_T0}, v6
            s_lshl_b32 s{S_T0}, s{S_RB}, 2
            s_add_u32 s{S_T0}, s{S_T0}, s{S_R}
            s_xor_b32 s{S_T2}, s{S_T0}, 1
            s_mul_i32 s{S_T0}, s{S_T0}, 144
            s_mul_i32 s{S_T2}, s{S_T2}, 144
            s_lshl_b32 s{S_T1}, s{S_CG}, 2
            s_lshl_b32 s{S_T3}, s{S_G}, 1
            s_add_u32 s{S_T1}, s{S_T1}, s{S_T3}
            s_add_u32 s{S_T1}, s{S_T1}, s{S_RR}
            s_add_u32 s{S_T1}, s{S_T1}, 112
            s_add_u32 s{S_T0}, s{S_T0}, s{S_T1}
            s_add_u32 s{S_T2}, s{S_T2}, s{S_T1}
            s_lshl_b32 s{S_AOFF}, s{S_T0}, 10
            s_lshl_b32 s{S_LA}, s{S_T2}, 10
            """)
            self.ph2_scalars(False)
        def sel(j): return lambda: P(f"v_cmp_eq_u32 vcc, {j}, v32\nv_cndmask_b32 v{SEL+j}, 0, v33, vcc")
        for j in range(8): hooks.setdefault((3 + (j >> 2), j & 3, 5), []).append(sel(j))
        def phird(hh): return lambda: (self.lgop("phi", f"ds_read_b64_tr_b16 {vr(WP+4*hh,2)}, v{16-hh}"), self.lgop("phi", f"ds_read_b64_tr_b16 {vr(WP+4*hh+2,2)}, v{16-hh} offset:128"))
        hooks.setdefault((2, 2, 4), []).append(phird(0))
        hooks.setdefault((2, 2, 5), []).append(phird(1))
        def phix(k): return lambda: P(f"v_xor_b32 v{WP+2*k}, v19, v{WP+2*k}\nv_xor_b32 v{WP+2*k+1}, v19, v{WP+2*k+1}")
        for k in range(4): hooks.setdefault((3, k, 4), []).append(phix(k))
        hooks.setdefault((5, 1, 4), []).append(lambda: P(f"v_xor_b32 v15, 0x400, v2"))
        def rr(rho, k): return lambda: self.lgop("rm", f"ds_read2_b32 {vr(RR[rho]+2*k,2)}, v{17+rho} offset0:{(8*(k>>1)+2*(k&1))*4+1} offset1:{(8*(k>>1)+2*(k&1)+1)*4+1}")
        for k in range(8): hooks.setdefault((7, 1 + (k >> 2), 4 + ((k >> 1) & 1)), []).append(rr(0, k))
        for k in range(8): hooks.setdefault((7, 3, 2 + k // 3), []).append(rr(1, k))
        hooks.setdefault((7, 2, 1), []).append(lambda: P(f"v_mul_f32 v{V_GR}, {f2u(LOG2E):#x}, v{V_GR+1}\nv_mul_f32 v{V_GR1}, {f2u(LOG2E):#x}, v{V_GR1+1}"))
        corr = self.m_phase1(True, consts, hooks)
        if 'wall' in self.x: self.mark("B")
        KB = 40; PH = [56, 64]; M = 16; TT = 192; VBF = 176; KV = [144, 160]; ZT = 240
        PB = [224, 208, 112, 128]
        def kcvt(src, rho): return [f"v_cvt_pk_bf16_f32 v{KB+8*rho+j}, v{src+16*rho+2*j}, v{src+16*rho+2*j+1}" for j in range(8)]
        def pmf(u): return f"{MF} {vr(PB[u],16)}, {vr(WP+4*(u>>1),4)}, {vr(KB+8*(u&1)+4*(u>>1),4)}, 0"
        def tmf(u, h): return f"{MF} {vr(TT,16)}, {vr(PH[u&1]+4*h,4)}, {vr(SEL+4*h,4)}, {vr(TT,16) if h else '0'}"
        def kvmf(u, h):
            kv = vr(KV[u >> 1], 16)
            return f"{MF} {kv}, {vr(PH[u&1]+4*h,4)}, {vr(VBF+8*(u&1)+4*h,4)}, {'0' if (u == 0 and h == 0) else kv}"
        def tcvt(u): return [f"v_cvt_pk_bf16_f32 v{PH[u&1]+j}, v{TT+2*j}, v{TT+2*j+1}" for j in range(8)]
        def tsum(u): return self.sum16l(TT, ZT, 22 + u)
        k0, k1 = kcvt(AK, 0), kcvt(AK, 1)
        vm0 = [f"v_mul_f32 v{AV+j}, v{AV+j}, v{RR[0]+j}" for j in range(8)]
        vpk = [f"v_pk_mul_f32 {vr(AV+j,2)}, {vr(AV+j,2)}, {vr(RR[0]+j,2)}" for j in range(8, 32, 2)]
        vcvt = [f"v_cvt_pk_bf16_f32 v{VBF+j}, v{AV+2*j}, v{AV+2*j+1}" for j in range(16)]
        S = [self.sm(PB[u], PH[u & 1], M, GRS[u & 1]) for u in range(4)]
        E(corr(2), corr(3), corr(4), k0[:4], pmf(0), k0[4:], k1[:4], pmf(1), k1[4:], vm0[:4], corr(5), vm0[4:])
        s = S[0]
        E(s['max'], s['fma'], vpk, pmf(2), s['exp'][:4], pmf(3), s['exp'][4:8], corr(0), s['exp'][8:12], corr(1), s['exp'][12:], vcvt, s['sum'], s['mul'], s['cvt'])
        for u in range(1, 4):
            s = S[u]
            self.stamp(f"l{u}")
            if u >= 2: E(kvmf(u - 2, 1))
            E(s['max'], s['fma'], tmf(u - 1, 0), s['exp'][:4], tmf(u - 1, 1), s['exp'][4:8])
            if u == 3:
                P("v_add_f32 v22, v22, v23\nv_mov_b32 v23, 1")
                for j in range(8): P(f"v_permlane16_swap_b32 v{KV[0]+j}, v{KV[0]+8+j}")
                for q in range(2): P(f"ds_write_b128 v4, {vr(KV[0]+4*q,4)} offset:{q*1024}")
                P("ds_write_b64 v15, v[22:23]")
            E(s['exp'][8:], tcvt(u - 1), tsum(u - 1), s['sum'], s['mul'])
            if u < 3: E(kvmf(u - 1, 0))
            else:
                inb = ["ds_read_b64 v[22:23], v2"] + [f"ds_read_b128 {vr(KV[1]+4*q,4)}, v5 offset:{(q&1)*1024 + (q>>1)*256}" for q in range(4)]
                E(inb)
            E(s['cvt'])
        q0, q1 = kcvt(AQ, 0), kcvt(AQ, 1)
        self.stamp("l4")
        self.mark("B")
        E(tmf(3, 0), q0[:6], tmf(3, 1), "s_waitcnt lgkmcnt(0)")
        self.retry("v_cmp_eq_u32 vcc, 0, v23", "\n".join(inb), wait="lgkmcnt(0)")
        E(q0[6:], q1[:2], kvmf(2, 0), q1[2:], kvmf(2, 1), tcvt(3), kvmf(3, 0))
        za = [f"v_add_f32 v{TT+j}, v{TT+j}, v{TT+8+j}" for j in range(8)] + [f"v_add_f32 v{TT+j}, v{TT+j}, v{TT+4+j}" for j in range(4)]
        za += [f"v_add_f32 v{TT}, v{TT}, v{TT+2}", f"v_add_f32 v{TT+1}, v{TT+1}, v{TT+3}", "v_add_f32 v22, v22, v24", f"v_add_f32 v{TT}, v{TT}, v{TT+1}", f"v_add_f32 v22, v22, v{TT}"]
        E(za[:6], kvmf(3, 1), za[6:], pmf(0), "v_mov_b32 v23, v22", "v_permlane32_swap_b32 v22, v23", "v_add_f32 v22, v22, v23")
        self.stamp("l5")
        self.vmop("kv", f"buffer_store_dword v22, v3, {srd(S_WS)}, s{M_Z} offen sc1")
        for j in range(8): P(f"v_cvt_pk_bf16_f32 v{PH[0]+j}, v{KV[1]+2*j}, v{KV[1]+2*j+1}")
        P(f"s_mov_b32 exec_lo, s{S_MASK}\ns_mov_b32 exec_hi, s{S_MASK}")
        for k in range(2):
            self.vmop("kv", f"buffer_store_dwordx4 {vr(PH[0]+4*k,4)}, v11, {srd(S_WS)}, s{S_KW} offen offset:{k*512} sc1")
        self.flag(37, S_PP, ex='0xffff')
        self.stamp("kvst")
        PQ = 80
        S = [self.sm(PB[u], PQ + 8*u, M, GRS[u & 1]) for u in range(4)]
        def qsm(u):
            s = S[u]
            ex = [pmf(1)] + s['exp'][:4] + [pmf(2)] + s['exp'][4:8] + [pmf(3)] + s['exp'][8:] if u == 0 else s['exp']
            return s['max'] + s['fma'] + ex + s['sum'] + s['mul'] + s['cvt']
        for u in range(4): E(qsm(u))
        self.stamp(3)
        P(f"s_xor_b32 s{M_Z}, s{S_AOFF}, 1024\ns_xor_b32 s{S_KW}, s{S_LA}, 1024\ns_setprio {self.opt('mp', 2)}")
        self.wo_setup()
        self.b_read(range(16), 8)
        KA = 40
        P(f"s_lshl_b32 s{S_T0}, s{S_R}, 2\nv_add_u32 v14, s{S_T0}, v11\nv_xor_b32 v15, 8, v14\ns_waitcnt lgkmcnt(8)")
        pr = [[f"ds_read_b32 v{36+a}, v{14+a} offset:16", f"ds_read_b128 {vr(KA+8*a,4)}, v{12+a}", f"ds_read_b128 {vr(KA+8*a+4,4)}, v{12+a} offset:16"] for a in range(2)]
        E(pr[0], pr[1], "s_waitcnt lgkmcnt(0)")
        self.stamp("wr")
        self.hot = True
        self.retry("v_cmp_eq_u32 vcc, 0, v36", "\n".join(pr[0] + pr[1]), wait="lgkmcnt(0)")
        self.stamp(6)
        OO = [112, 56, 16, 80]; OC = [72, 76, 32, 2]
        def omf(u):
            o = vr(OO[u], 16); a = u >> 1
            return [f"{MF} {o}, {vr(KA+8*a,4)}, {vr(PQ+8*u,4)}, 0", f"{MF} {o}, {vr(KA+8*a+4,4)}, {vr(PQ+8*u+4,4)}, {o}"]
        def opost(u):
            O = OO[u]
            L = [f"v_add_f32 v{O+8}, {f2u(1e-6):#x}, v{O+8}", f"v_rcp_f32 v{O+8}, v{O+8}"]
            L += [f"v_mul_f32 v{O+j}, v{O+j}, v{O+8}" for j in range(8)]
            L += [f"v_cvt_pk_bf16_f32 v{OC[u]+j}, v{O+2*j}, v{O+2*j+1}" for j in range(4)]
            return L
        def ost(u): self.vmop("o", f"buffer_store_dwordx4 {vr(OC[u],4)}, v6, {srd(S_WS)}, s{(S_AOFF, S_LA, M_Z, S_KW)[u]} offen sc1")
        m0_, m1_, m2_, m3_ = omf(0), omf(1), omf(2), omf(3)
        E(m0_[0], m0_[1], m1_[0], m1_[1])
        self.retry("v_cmp_eq_u32 vcc, 0, v37", "\n".join(pr[1]), wait="lgkmcnt(0)")
        self.hot = False
        p = opost(0); E(m2_[0], p[:6], m2_[1], p[6:]); ost(0)
        p = opost(1); E(m3_[0], p[:6], m3_[1], p[6:]); ost(1)
        E(opost(2)); ost(2)
        E(opost(3)); ost(3)
        self.stamp("ost")

    def gather(self):
        P = self.P; E = self.emit
        LD = 64; SU = 16; Z = 48; S2 = 32
        kvl = f"s_buffer_load_dwordx16 s[{S_F16}:{S_F16+15}], {srd(S_WS)}, s{M_KFL} glc"
        P(f"""
        v_and_b32 v36, 0x13, v1
        v_and_b32 v37, 4, v1
        v_lshl_or_b32 v36, v37, 1, v36
        v_bfe_u32 v37, v1, 3, 1
        v_lshl_or_b32 v36, v37, 2, v36
        v_lshlrev_b32 v37, 3, v{V_H}
        v_sub_u32 v36, v36, v37
        v_lshrrev_b32 v37, 1, v36
        v_and_b32 v36, 1, v36
        v_lshlrev_b32 v36, 4, v36
        v_mov_b32 v38, 0x3f80
        v_lshlrev_b32 v36, v36, v38
        """)
        for j in range(4): P(f"v_cmp_eq_u32 vcc, {j}, v37\nv_cndmask_b32 v{S2+j}, 0, v36, vcc")
        P(f"""
        s_lshl1_add_u32 s{S_T0}, s{S_CH}, s{S_KQ}
        s_mul_i32 s{S_T1}, s{S_T0}, {1024 - 128}
        s_sub_u32 s{S_T1}, 4096, s{S_T1}
        v_lshlrev_b32 v36, 2, v{V_L31}
        v_add_u32 v36, s{S_T1}, v36
        s_xor_b32 s{S_T0}, s{S_R}, 2
        s_lshl_b32 s{S_T0}, s{S_T0}, 11
        s_add_u32 s{S_T0}, s{S_T0}, {T_KVS}
        v_lshlrev_b32 v41, 1, v{V_L31}
        v_add_u32 v41, s{S_T0}, v41
        v_lshrrev_b32 v37, 4, v1
        v_and_b32 v40, 15, v1
        v_mul_u32_u24 v40, {KVR}, v40
        v_lshl_add_u32 v40, v37, 4, v40
        v_add_u32 v40, s{S_T0}, v40
        s_lshl_b32 s{S_T0}, s{S_R}, 2
        v_add_u32 v42, s{S_T0}, v11
        s_mov_b32 s{S_SPIN}, 0
        s_waitcnt vmcnt(0)
        {kvl}
        """)
        self.cnt_add(4, 11, 12)
        self.stamp("l5")
        mask = "\n".join(f"s_cmp_eq_u64 s[{S_F16+j}:{S_F16+j+1}], s[{S_TP}:{S_TP+1}]\ns_addc_u32 s{M_RDY}, s{M_RDY}, s{M_RDY}" for j in range(14, -2, -2))
        def lds(k, so=S_T3): return [f"buffer_load_dwordx4 {vr(LD+4*k,4)}, v6, {srd(S_WS)}, s{so} offen sc1", f"buffer_load_dword v{Z+k}, v36, {srd(S_WS)}, s{so} offen sc1"]
        for k in range(0, 16, 2):
            P(f"""
            s_and_b32 s{S_T0}, s{M_RDY}, s{M_PEND}
            s_cbranch_scc1 L_KVR{k}
            s_call_b64 s[{S_RA}:{S_RA+1}], L_KVPOLL
            L_KVR{k}:
            s_ff1_i32_b32 s{S_T2}, s{S_T0}
            s_bitset0_b32 s{M_PEND}, s{S_T2}
            s_mul_i32 s{S_T3}, s{S_T2}, {2*KVP_SZ}
            s_add_u32 s{S_T3}, s{S_T3}, s{M_PO}
            s_add_u32 s{S_T2}, s{S_T3}, {KVP_SZ}
            """)
            for c in lds(k): self.vmop(f"p{k}", c)
            for c in lds(k + 1, S_T2): self.vmop(f"p{k+1}", c)
            self.stamp(f"k{k}")
        self.stamp("gi"); self.sval("nsp", S_SPIN)
        P(self.hflag(0))
        P("L_GPROC:")
        for j in range(16):
            self.vmwait(f"p{j}")
            P(f"{MF} {vr(SU,16)}, {vr(S2,4)}, {vr(LD+4*j,4)}, {vr(SU,16) if j else '0'}")
            if j: P(f"v_add_f32 v{Z}, v{Z}, v{Z+j}")
        P(f"v_cvt_pk_bf16_f32 v43, v{Z}, v{Z}\nds_write_b16 v41, v43 offset:{16*KVR}")
        for k in range(4): P(f"v_cvt_pk_bf16_f32 v{44+k}, v{SU+2*k}, v{SU+2*k+1}")
        P(f"""
        ds_write_b128 v40, v[44:47]
        v_cmp_u_f32 vcc, v{Z}, v{SU}
        s_cbranch_vccnz L_GRETRY
        L_GOK:
        ds_write_b32 v42, v42 offset:16
        """)
        self.stamp(5); self.sval("nrt", M_RT)
        self.gretry = "\n".join(f"s_add_u32 s{S_T3}, s{M_PO}, {k*KVP_SZ}\n" + "\n".join(lds(k)) for k in range(16))
        self.kvpoll = f"""
        L_KVPOLL:
        {self.stxt("pa")}
        s_add_u32 s{S_SPIN}, s{S_SPIN}, 1
        s_cmp_gt_u32 s{S_SPIN}, SPIN_MAX
        s_cselect_b32 s{S_T2}, -1, 0
        s_waitcnt lgkmcnt(0)
        {mask}
        {kvl}
        {self.stxt("pb")}
        s_or_b32 s{M_RDY}, s{M_RDY}, s{S_T2}
        s_and_b32 s{S_T0}, s{M_RDY}, s{M_PEND}
        s_cbranch_scc0 L_KVPOLL
        s_setpc_b64 s[{S_RA}:{S_RA+1}]
        """
    def wo_setup(self):
        self.P(f"""
        v_mov_b32 v11, {T_CNT}
        ds_read_b32 v10, v11 offset:4
        s_cmp_eq_u32 s{S_KQ}, 0
        s_cselect_b32 s{S_T0}, {T_WOL}, 0
        s_lshl_b32 s{S_T1}, s{S_KQ}, 6
        v_xor_b32 v8, s{S_T1}, v7
        v_add_u32 v8, s{S_T0}, v8
        v_xor_b32 v9, 64, v8
        s_waitcnt lgkmcnt(0)
        """)
        self.cnt_check(4, 11, 10)
        self.stamp(4)

    def phase2H(self):
        P = self.P; E = self.emit
        h7 = self.opt("h7", 6)
        self.vm = ["h1"] + ["h2"] * h7
        if 'wall' in self.x: self.mark("S")
        P("s_barrier")
        self.stamp(2)
        P(f"s_setprio {self.opt('hp2', 3)}")
        q = self.dma_w2(range(12 + h7, 28)) + self.dma_wo(range(8))
        n1 = self.opt("n1", 4); per = -(-(len(q) - n1) // 4)
        self.tissue(q[:n1])
        self.stamp("l1"); self.vmwait("h1"); self.lsync(0, 4); self.stamp("l2")
        for k in range(4):
            self.b_read(range(4*k, 4*k + 4), 7)
            self.tissue(q[n1 + k*per:n1 + (k+1)*per])
            P("s_waitcnt lgkmcnt(0)")
        self.stamp("l3"); self.lsync(0, 8); self.stamp("l4")
        self.tissue(self.dma_wo(range(8, 16)))
        AC = 16; RG = 64; D = self.opt("D", 12); PK = 192
        self.stamp("lw")
        self.mark("S")
        self.tagpair()
        P(f"s_cmp_eq_u32 s{S_TYPE}, 0\ns_cbranch_scc0 L_GATH\n{self.hflag(0)}\ns_waitcnt vmcnt(0)")
        self.cnt_add(4, 11, 12)
        self.stamp("l5")
        P("s_branch L_G0")
        self.mark("B")
        n0 = len(P.items)
        P("L_GATH:")
        self.gather()
        body = P.items[n0:]; del P.items[n0:]
        P(self.kvpoll)
        P.items += body
        P("L_G0:")
        self.mark("S"); self.hot = True
        self.lgall(); self.sretry(8, self.hflag(0))
        self.stamp("js")
        P(f"s_setprio {self.opt('hp3', 3)}")
        if self.opt("op", 9) < 4: P(f"s_cmp_lg_u32 s{S_LA}, 0\ns_cbranch_scc1 L_FP\ns_setprio {self.opt('op', 9)}\nL_FP:")
        sc = '' if 'pld' in self.x else 'sc1'
        def load(s):
            if s % 4 == 0 and s: P(f"s_add_u32 s{S_AOFF}, s{S_AOFF}, 4096")
            self.vmop(f"a{s}", f"buffer_load_dwordx4 {vr(RG + 4*(s % 16), 4)}, v6, {srd(S_WS)}, s{S_AOFF} offen offset:{(s % 4)*1024} {sc}")
        def bf(s, ct): return 128 + 8*(s if s < 16 else s % 4) + 4*ct
        zf = "".join(f"s_mov_b64 s[{r}:{r+1}], 0\n" for r in range(S_F, S_F + 8, 2))
        for s in range(D):
            load(s)
            if s == self.opt("p1", 3): P(zf + self.hflag(1))
        gh = f"s_buffer_load_dword s{S_F}, {srd(S_WS)}, s{S_AO} offset:{3*K - 4} glc"
        chk = {16*st - D: st for st in (1, 2, 3)}
        pol = {16*st - D - self.opt("pl", 9): st for st in (2, 3)}
        for s in range(56):
            self.vmwait(f"a{s}")
            self.lgwait(f"b{s}")
            if s % 8 == 0: self.stamp(f"s{s}")
            if s == self.opt("wgs", 8): self.mark("N", True); self.hot = 'wall' in self.x
            for ct in range(2):
                a = vr(AC + 16*ct, 16)
                P(f"{MF} {a}, {vr(bf(s, ct), 4)}, {vr(RG + 4*(s % 16), 4)}, {a if s else '0'}")
                if 16 <= s + 2 < 56:
                    for t in self.trd(bf(s + 2, ct), 7 + ct + 2*((s + 2) >> 5), ((s + 2) & 31) * 2048): self.lgop(f"b{s+2}", t)
                if ct == 0 and s in pol: P(zf + self.hflag(pol[s]))
                if ct == 1 and s in chk:
                    self.sretry(8, self.hflag(chk[s])); self.stamp(f"f{chk[s]}")
                if ct == 1 and s == 21: self.cnt_check(4, 11, 13)
                if ct == 0 and s == 18: self.lgop("cr", "ds_read_b32 v13, v11 offset:4")
                if ct == 0 and s == self.opt("ps", 50): self.cnt_add(8, 11, 15)
                if ct == 0 and 40 <= s < 46: P(f"v_mov_b32 v{PK + 4*(s - 40) + 3}, s{S_TAG}")
                if ct == 0 and s == 52: P(f"s_lshl_b32 s{S_T0}, s{S_CH}, 13\ns_add_u32 s{S_T0}, s{S_T0}, {T_G}\nv_add_u32 v12, s{S_T0}, v6\ns_lshl_b32 s{S_T0}, s{S_CH}, 2\nv_add_u32 v14, s{S_T0}, v11")
                if ct == 0 and s == 54: self.lgop("cr", "ds_read_b32 v13, v11 offset:8")
            if s + D < 56: load(s + D)
        self.stamp(8)
        def pk(v): return PK + 12*(v >> 3) + 4*((v & 7) // 3) + (v & 7) % 3
        P(f"s_cmp_eq_u32 s{S_LA}, 0\ns_cbranch_scc1 L_OWN")
        for q_ in range(6):
            for v in range(16):
                if (pk(v) - PK) // 4 == q_: P(f"v_cvt_pk_bf16_f32 v{pk(v)}, v{AC + 2*v}, v{AC + 2*v + 1}")
            if q_ == 3: P(f"s_add_u32 s{S_AF}, s{S_AF}, {3*K}")
            P(f"buffer_store_dwordx4 {vr(PK + 4*q_, 4)}, v6, {srd(S_WS)}, s{S_AF} offen offset:{(q_ % 3)*1024} sc1")
        ho = ["ds_read_b32 v13, v14 offset:32"] + [f"ds_read_b128 {vr(AC + 4*k, 4)}, v12 offset:{k*1024}" for k in range(4)]
        P("v_add_u32 v12, 0x1000, v12")
        E(ho)
        P(gh)
        self.lgall()
        self.retry("v_cmp_eq_u32 vcc, 0, v13", "\n".join(ho), wait="lgkmcnt(0)")
        P("s_branch L_GFIN")
        P("L_OWN:")
        self.lgall(); self.cnt_check(8, 11, 13)
        for k in range(4): P(f"ds_write_b128 v12, {vr(AC + 16 + 4*k, 4)} offset:{4096 + k*1024}")
        P("ds_write_b32 v14, v14 offset:32")
        P(gh)
        self.lgall()
        P("L_GFIN:")
        PL = PK + 24
        gl = "\n".join(f"buffer_load_dwordx4 {vr(PL + 4*q_, 4)}, v6, {srd(S_WS)}, s{S_AO} offen offset:{q_*1024} sc1" for q_ in range(3))
        self.sretry(1, gh)
        self.stamp("gx")
        P(gl)
        cond = [f"v_xor_b32 v13, s{S_TAG}, v{PL+3}", f"v_xor_b32 v14, s{S_TAG}, v{PL+7}", f"v_xor_b32 v15, s{S_TAG}, v{PL+11}", "v_or3_b32 v13, v13, v14, v15", "v_cmp_ne_u32 vcc, 0, v13"]
        P("s_waitcnt vmcnt(0)")
        self.retry("\n".join(cond), gl)
        self.stamp(9)
        EX = 64
        for h in range(2):
            r = range(8*h, 8*h + 8)
            for v in r: P(f"v_lshlrev_b32 v{EX+v}, 16, v{pk(v >> 1) + 24}" if v % 2 == 0 else f"v_and_b32 v{EX+v}, s{S_MASK}, v{pk(v >> 1) + 24}")
            for v in r: P(f"v_add_f32 v{AC+v}, v{AC+v}, v{EX+v}")
            for v in r: P(f"v_mul_f32 v{EX+v}, {f2u(-LOG2E):#x}, v{AC+v}")
            for v in r: P(f"v_exp_f32 v{EX+v}, v{EX+v}")
            for v in r: P(f"v_add_f32 v{EX+v}, 1.0, v{EX+v}")
            for v in r: P(f"v_rcp_f32 v{EX+v}, v{EX+v}")
            for v in r:
                P(f"v_mul_f32 v{AC+v}, v{AC+v}, v{EX+v}")
                if v % 4 == 3: P(f"ds_write_b128 v12, {vr(AC + v - 3, 4)} offset:{(v >> 2)*1024}")
        P("s_waitcnt lgkmcnt(0)")
        self.stamp("hb")
        P("s_barrier")
        self.stamp(10)

    def phase2M(self):
        P = self.P; E = self.emit
        AC = 16; OA = 64; XV = 48
        P(f"""
        v_mov_b32 v37, s{S_TAG}
        v_lshlrev_b32 v{V_P0}, 7, v1
        v_and_b32 v10, 31, v1
        v_lshrrev_b32 v12, 5, v1
        v_lshlrev_b32 v10, 10, v10
        v_lshl_add_u32 v10, v12, 4, v10
        s_waitcnt vmcnt(0)
        """)
        self.flag(37, S_FL)
        self.stamp("ofl")
        for a in range(2): self.vmop("x", f"buffer_load_dwordx4 {vr(XV + 4*a, 4)}, v10, {srd(S_X)}, s{S_OUTO} offen offset:{32*a}")
        P(f"s_setprio {self.opt('mw', 0)}\nds_read_b32 v13, v11 offset:8\ns_waitcnt lgkmcnt(0)")
        self.hot = True
        self.cnt_check(8, 11, 13)
        self.hot = 'wall' in self.x
        self.mark("N", True)
        self.tagpair()
        fl = self.hflag(0)
        P(f"""
        {fl}
        s_lshl_b32 s{S_T0}, s{S_R}, 12
        s_add_u32 s{S_T0}, s{S_T0}, {T_X}
        v_add_u32 v14, s{S_T0}, v6
        v_xor_b32 v15, 0x2000, v14
        s_lshl1_add_u32 s{S_T0}, s{S_CH}, s{S_KQ}
        s_lshl_b32 s{S_T0}, s{S_T0}, 12
        s_add_u32 s{S_T0}, s{S_T0}, {T_G}
        v_add_u32 v12, s{S_T0}, v6
        s_waitcnt lgkmcnt(0)
        """)
        self.stamp(7)
        self.sretry(8, fl)
        self.stamp("y5")
        P(f"s_setprio {self.opt('mp2', 3)}")
        sc = '' if 'pld' in self.x else 'sc1'
        for s in range(16):
            if s % 4 == 0 and s: P(f"s_add_u32 s{S_AO}, s{S_AO}, 4096")
            self.vmop(f"a{s}", f"buffer_load_dwordx4 {vr(OA + 4*s, 4)}, v6, {srd(S_WS)}, s{S_AO} offen offset:{(s % 4)*1024} {sc}")
        XU = 128
        xu = [t for k in range(8) for t in (f"v_lshlrev_b32 v{XU+2*k}, 16, v{XV+k}", f"v_and_b32 v{XU+1+2*k}, s{S_MASK}, v{XV+k}")]
        for s in range(16):
            self.vmwait(f"a{s}")
            for ct in (1, 0):
                a = vr(AC + 16*ct, 16)
                P(f"{MF} {a}, {vr(128 + 8*s + 4*ct, 4)}, {vr(OA + 4*s, 4)}, {a if s else '0'}")
                if 6 <= s < 10 and ct == 1: E(xu[4*(s-6):4*(s-6)+4])
        self.stamp(8)
        for k in range(4): P(f"ds_write_b128 v14, {vr(AC + 16 + 4*k, 4)} offset:{k*1024}")
        P("s_waitcnt lgkmcnt(0)")
        self.stamp(9)
        P("s_barrier")
        self.stamp("fb")
        XI, GI = 64, 80
        for h in range(2):
            for k in (2*h, 2*h + 1): P(f"ds_read_b128 {vr(XI + 4*k, 4)}, v15 offset:{k*1024}")
            for k in (2*h, 2*h + 1): P(f"ds_read_b128 {vr(GI + 4*k, 4)}, v12 offset:{k*1024}")
        for h in range(2):
            r = range(8*h, 8*h + 8, 2)
            P(f"s_waitcnt lgkmcnt({6 - 4*h})")
            for k in r: P(f"v_pk_add_f32 {vr(AC+k,2)}, {vr(AC+k,2)}, {vr(XI+k,2)}")
            P(f"s_waitcnt lgkmcnt({4 - 4*h})")
            for k in r: P(f"v_pk_fma_f32 {vr(AC+k,2)}, {vr(AC+k,2)}, {vr(GI+k,2)}, {vr(XU+k,2)}")
            for k in r: P(f"v_cvt_pk_bf16_f32 v{XV + k//2}, v{AC+k}, v{AC+k+1}")
            P(f"buffer_store_dwordx4 {vr(XV + 4*h, 4)}, v10, {srd(S_OUT)}, s{S_OUTO} offen offset:{32*h} {'sc1' if 'outsc1' in self.x else ''}")
        self.stamp(10)

    def write_stamps(self):
        P = self.P
        if not self.stamps: return
        wg = self.opt("amp", -1)
        if wg >= 0:
            P(f"""
            s_waitcnt lgkmcnt(0)
            s_cmp_lg_u32 s2, {wg}
            s_cbranch_scc1 L_END
            s_cmp_lg_u32 s{S_WAVE}, {self.opt("ampw", 0)}
            s_cbranch_scc1 L_END
            s_sub_u32 s{S_T0}, s{S_ST+2}, s{S_ST}
            s_min_u32 s{S_T0}, s{S_T0}, 400000
            s_memrealtime s[{S_ST+4}:{S_ST+5}]
            L_AMP:
            s_memrealtime s[{S_ST+6}:{S_ST+7}]
            s_waitcnt lgkmcnt(0)
            s_sub_u32 s{S_T1}, s{S_ST+6}, s{S_ST+4}
            s_cmp_lt_u32 s{S_T1}, s{S_T0}
            s_cbranch_scc1 L_AMP
            """)
            return
        P(f"""
        s_memrealtime s[{S_ST+22}:{S_ST+23}]
        s_waitcnt lgkmcnt(0)
        s_lshl_b32 s{S_T0}, s2, 3
        s_add_u32 s{S_T0}, s{S_T0}, s{S_WAVE}
        s_lshl_b32 s{S_T0}, s{S_T0}, 6
        s_add_u32 s{S_T0}, s{S_T0}, {WS_STAMP}
        s_mov_b64 exec, 1
        """)
        for i in range(12):
            P(f"v_mov_b32 v13, s{S_ST+2*i}\nbuffer_store_dword v13, off, {srd(S_WS)}, s{S_T0} offset:{4*i}")

    def pads(self):
        P = self.P
        segs = {"A": [], "B": [], "S": []}
        for k, (pos, kind) in enumerate(self.wlist()):
            for u in ("AB" if kind == "T" else "S"): segs[u] += [(k, r) for r in range(4)]
        names = [f"{u}{k}_{r}" for u in segs for k, r in segs[u]]
        n0 = len(P.items)
        for n in names: P.label(f"SEG_{n}")
        sz = sizes_of(P, f".set SPIN_MAX, 200000\n.set CODE_BYTES, 40000\n{KNAME}:\n")
        del P.items[n0:]
        step = self.opt("pstep", 1024)
        reg = {"L_MB": None, "L_PH2M": "S", "L_MA": None, "L_STUBS": None}
        for it in P.items:
            if it[0] == "l" and it[1].startswith("WM"): reg[it[1]] = None if it[1][2] == "N" else it[1][2]
        spots = {"A": [], "B": [], "S": []}
        cur = None; acc = step
        for i, it in enumerate(P.items):
            if it[0] == "l" and it[1] in reg and cur != reg[it[1]]: cur = reg[it[1]]; acc = step
            if it[0] == "i" and cur:
                if acc >= step: spots[cur].append(i); acc = 0
                acc += sz[i]
        ins = {}
        lab = {it[1]: i for i, it in enumerate(P.items) if it[0] == "l"}
        for t, L in spots.items():
            ns = len(segs[t])
            for g, (k, r) in enumerate(segs[t]):
                seg = L[len(L) * g // ns:len(L) * (g + 1) // ns]
                if not seg: ins.setdefault(lab[f"RET{k}_{t}"], []).append(("l", f"SEG_{t}{k}_{r}"))
                for j, i in enumerate(seg):
                    nxt = f"PAD_{t}{g}_{j+1}" if j + 1 < len(seg) else f"RET{k}_{t}"
                    ins[i] = [("l", f"SEG_{t}{k}_{r}" if j == 0 else f"PAD_{t}{g}_{j}"), ("i", Ins(f"s_cbranch_execz {nxt}"))]
        new = []
        for i, it in enumerate(P.items):
            new += ins.get(i, []); new.append(it)
        P.items = new
        print("pads", {t: len(L) for t, L in spots.items()}, file=sys.stderr)
    def build(self):
        P = self.P
        if self.stamps:
            for i in range(12): P(f"s_mov_b32 s{S_ST+2*i}, 0")
        self.prologue()
        def sec(f, *a):
            self.vm = []; self.lg = []; self.hot = False
            f(*a)
        sec(self.HA)
        sec(self.HB)
        P.label("L_PH2H")
        sec(self.phase2H)
        P("s_branch L_FIN")
        P.label("L_MA")
        sec(self.MA)
        P.label("L_MB")
        sec(self.MB)
        P.label("L_PH2M")
        sec(self.phase2M)
        P.label("L_FIN")
        self.mark("N")
        self.write_stamps()
        P.label("L_END")
        P("s_endpgm")
        self.slow_paths()
        if 'nowarm' not in self.x:
            P.label("L_STUBS")
        P(f"""
        L_GRETRY:
        s_add_u32 s{M_RT}, s{M_RT}, 1
        s_cmp_gt_u32 s{M_RT}, 1000
        s_cbranch_scc1 L_GOK
        {self.gretry}
        s_waitcnt vmcnt(0)
        s_branch L_GPROC
        """)
        if 'nowarm' not in self.x: self.pads()
        P.fix_hazards()
        hdr = open("recurrent_scan__linear_kernel_hedgehog__dense_activation_silu__prompt.s.ref").read().split("; Override")[0]
        out = hdr + f"; @launch grid=(256,1,1) block=(512,1,1) lds={LDS_BYTES}\n"
        out += f'.amdgcn_target "amdgcn-amd-amdhsa--gfx950"\n.set SPIN_MAX, 200000\n.set CODE_BYTES, L_CODE_END - {KNAME} - 2048\n.text\n.globl {KNAME}\n.p2align 8\n.type {KNAME},@function\n{KNAME}:\n'
        out += P.text()
        out += ".rept 512\ns_nop 0\n.endr\nL_CODE_END:\ns_endpgm\n"
        out += f""".section .rodata,"a"
.p2align 6
.amdhsa_kernel {KNAME}
  .amdhsa_next_free_vgpr 256
  .amdhsa_next_free_sgpr 102
  .amdhsa_accum_offset 256
  .amdhsa_group_segment_fixed_size 0
  .amdhsa_kernarg_size 80
  .amdhsa_user_sgpr_count 2
  .amdhsa_user_sgpr_kernarg_segment_ptr 1
  .amdhsa_system_sgpr_workgroup_id_x 1
.end_amdhsa_kernel
"""
        return out

if __name__ == "__main__":
    import argparse
    ap = argparse.ArgumentParser()
    ap.add_argument("-o", default="recurrent_scan__linear_kernel_hedgehog__dense_activation_silu__prompt.s")
    ap.add_argument("--stamps", default="")
    ap.add_argument("-x", default="")
    a = ap.parse_args()
    open(a.o, "w").write(Gen(stamps=a.stamps.split(",") if a.stamps else None, x=a.x.split(",")).build())
```
